```python
import torch

def _softmax(x, axis=-1):
    return torch.softmax(x, dim=axis)

def _gelu(x):
    return torch.nn.functional.gelu(x, approximate='tanh')

def _silu(x):
    return torch.nn.functional.silu(x)

def _sigmoid(x):
    return torch.sigmoid(x)

def _layernorm(x, axis=-1, eps=1e-05):
    m = x.mean(dim=axis, keepdim=True)
    v = x.var(dim=axis, keepdim=True, unbiased=False)
    return (x - m) / torch.sqrt(v + eps)

def _scatter_add(tgt, idx, src, axis=0):
    return tgt.clone().index_add_(axis, idx, src)

def _segment_sum(src, seg, n):
    out = torch.zeros((n,) + src.shape[1:], dtype=src.dtype)
    return out.index_add_(0, seg, src)

def _pad(x, pw):
    flat = tuple((v for pair in reversed(pw) for v in pair))
    return torch.nn.functional.pad(x, flat)
kernel_name = 'adaLN_cond__memory_aug_recurrent_mem_tr__mixer_channel_mlp__prompt'

def setup_inputs():

    _w = lambda a: (lambda t: t.to(torch.bfloat16) if t.is_floating_point() else t)(torch.as_tensor(a))

    def _A_setup():
        B, S, Dm = (1, 2048, 512)
        H, Dh = (32, 128)
        M, seg = (8, 32)
        seg = min(seg, S)
        S = S // seg * seg
        return {'x': _w((lambda *s: torch.randn(*s, dtype=torch.bfloat16) * 0.05)(B, S, Dm)), 'mem0': _w((lambda *s: torch.randn(*s, dtype=torch.bfloat16) * 0.4)(B, M, Dm)), 'Wq': _w((lambda *s: torch.randn(*s, dtype=torch.bfloat16) * 3.2)(Dm, H, Dh) * Dm ** (-0.5)), 'Wk': _w((lambda *s: torch.randn(*s, dtype=torch.bfloat16) * 3.2)(Dm, H, Dh) * Dm ** (-0.5)), 'Wv': _w((lambda *s: torch.randn(*s, dtype=torch.bfloat16) * 0.4)(Dm, H, Dh) * Dm ** (-0.5)), 'Wo': _w((lambda *s: torch.randn(*s, dtype=torch.bfloat16) * 0.4)(H, Dh, Dm) * (H * Dh) ** (-0.5)), 'seg_len': seg}
    _A_in = _A_setup()

    def _B_setup():
        B, S, D, F = (1, 2048, 512, 1792)
        return {'x': _w((lambda *s: torch.randn(*s, dtype=torch.bfloat16) * 0.05)(B, S, D)), 'w1': _w((lambda *s: torch.randn(*s, dtype=torch.bfloat16) * 3.2)(D, F) * D ** (-0.5)), 'b1': _w((lambda *s: torch.randn(*s, dtype=torch.bfloat16) * 0.1)(F)), 'w2': _w((lambda *s: torch.randn(*s, dtype=torch.bfloat16) * 0.1)(F, D) * F ** (-0.5)), 'b2': _w((lambda *s: torch.randn(*s, dtype=torch.bfloat16) * 0.1)(D))}
    _B_in = _B_setup()
    return {'A_x': _A_in['x'], 'A_mem0': _A_in['mem0'], 'A_Wq': _A_in['Wq'], 'A_Wk': _A_in['Wk'], 'A_Wv': _A_in['Wv'], 'A_Wo': _A_in['Wo'], 'A_seg_len': _A_in['seg_len'], 'B_x': _B_in['x'], 'B_w1': _B_in['w1'], 'B_b1': _B_in['b1'], 'B_w2': _B_in['w2'], 'B_b2': _B_in['b2'], 'c': _w((lambda *s: torch.randn(*s, dtype=torch.bfloat16) * 0.05)(1, 512) * 8.0), 'w_mod': _w((lambda *s: torch.randn(*s, dtype=torch.bfloat16) * 0.05)(512, 6 * 512) * 512 ** (-0.5) * 8.0)}

def reference(A_x, A_mem0, A_Wq, A_Wk, A_Wv, A_Wo, A_seg_len, B_x, B_w1, B_b1, B_w2, B_b2, c, w_mod):

    def _A_ref(x, mem0, Wq, Wk, Wv, Wo, seg_len):
        B, S, Dm = x.shape
        H, Dh = (Wq.shape[1], Wq.shape[2])
        M = mem0.shape[1]
        scale = Dh ** (-0.5)
        n_seg = S // seg_len
        L = M + seg_len
        idx = torch.arange(L)
        mask = (idx[:, None] < M) | (idx[:, None] >= idx[None, :])
        mem = mem0
        outs = []
        for s in range(n_seg):
            xs = x[:, s * seg_len:(s + 1) * seg_len, :].clone()
            h = torch.concatenate([mem, xs], axis=1)
            q = torch.einsum('btd,dhe->bhte', h, Wq)
            k = torch.einsum('btd,dhe->bhte', h, Wk)
            v = torch.einsum('btd,dhe->bhte', h, Wv)
            scores = torch.einsum('bhqe,bhke->bhqk', q, k) * scale
            scores = torch.where(mask[None, None], scores, -1000000000.0)
            p = _softmax(scores, axis=-1)
            o = torch.einsum('bhqk,bhke->bhqe', p, v)
            o = torch.einsum('bhte,hed->btd', o, Wo)
            mem = o[:, :M, :].clone()
            outs.append(o[:, M:, :])
        return torch.concatenate(outs, axis=1)

    def _B_ref(x, w1, b1, w2, b2):
        y = _layernorm(x, axis=-1)
        h = _gelu(torch.einsum('bsd,df->bsf', y, w1) + b1)
        return torch.einsum('bsf,fd->bsd', h, w2) + b2
    x = A_x
    mod = (_silu(c) @ w_mod).reshape(c.shape[0], 6, 1, -1)
    sa, ca, ga, sb, cb, gb = (mod[:, 0].clone(), mod[:, 1].clone(), mod[:, 2].clone(), mod[:, 3].clone(), mod[:, 4].clone(), mod[:, 5].clone())
    h = _layernorm(x, axis=-1) * (1 + ca) + sa
    x = x + ga * _A_ref(h, A_mem0, A_Wq, A_Wk, A_Wv, A_Wo, A_seg_len)
    h = _layernorm(x, axis=-1) * (1 + cb) + sb
    x = x + gb * _B_ref(h, B_w1, B_b1, B_w2, B_b2)
    return x
```

```python
class Asm:
    def __init__(self):
        self.lines = []
        self._lab = 0
    def __call__(self, s=""):
        for ln in s.split("\n"):
            self.lines.append(ln)
    def emit(self, s):
        self.lines.append("    " + s)
    def label(self, name):
        self.lines.append(name + ":")
    def newlabel(self, base="L"):
        self._lab += 1
        return f"{base}_{self._lab}"
    def comment(self, s):
        self.lines.append("    ; " + s)
    def text(self):
        return "\n".join(self.lines) + "\n"

def v(i, n=1):
    return f"v{i}" if n == 1 else f"v[{i}:{i+n-1}]"
def a(i, n=1):
    return f"a{i}" if n == 1 else f"a[{i}:{i+n-1}]"
def s(i, n=1):
    return f"s{i}" if n == 1 else f"s[{i}:{i+n-1}]"

def kernel_begin(A, name):
    A(f".globl {name}")
    A(".p2align 8")
    A(f".type {name},@function")
    A(f"{name}:")

def kernel_desc(name, vgpr, sgpr=102, agpr=0, wgid_y=False):
    acc = ((vgpr + 3) // 4) * 4
    if acc < 4: acc = 4
    nfv = acc + agpr if agpr else vgpr
    t = [f".amdhsa_kernel {name}",
         f"  .amdhsa_next_free_vgpr {nfv}",
         f"  .amdhsa_next_free_sgpr {sgpr}",
         f"  .amdhsa_accum_offset {acc}",
         "  .amdhsa_group_segment_fixed_size 0",
         "  .amdhsa_kernarg_size 136",
         "  .amdhsa_user_sgpr_count 2",
         "  .amdhsa_user_sgpr_kernarg_segment_ptr 1",
         "  .amdhsa_system_sgpr_workgroup_id_x 1"]
    if wgid_y:
        t.append("  .amdhsa_system_sgpr_workgroup_id_y 1")
    t.append(".end_amdhsa_kernel")
    return "\n".join(t) + "\n"

KA = dict(x=0, mem0=8, Wq=16, Wk=24, Wv=32, Wo=40, seg=48, Bx=56, w1=64, b1=72, w2=80, b2=88, c=96, wmod=104, out=112, dbg=120, ws=128)

def load_ptr(A, sdst, name):
    A.emit(f"s_load_dwordx2 {s(sdst,2)}, s[0:1], {KA[name]}")

def make_srd(A, sd, sptr, nbytes, off=0):
    if off:
        A.emit(f"s_add_u32 {s(sd)}, {s(sptr)}, {off & 0xffffffff}")
        A.emit(f"s_addc_u32 {s(sd+1)}, {s(sptr+1)}, {off >> 32}")
    else:
        A.emit(f"s_mov_b32 {s(sd)}, {s(sptr)}")
        A.emit(f"s_mov_b32 {s(sd+1)}, {s(sptr+1)}")
    A.emit(f"s_and_b32 {s(sd+1)}, {s(sd+1)}, 0xffff")
    A.emit(f"s_mov_b32 {s(sd+2)}, {nbytes}")
    A.emit(f"s_mov_b32 {s(sd+3)}, 0x00020000")
```

```python
from asmlib import *

WS = dict(
    MOD=0x0000000, H=0x0100000, WQKV=0x0400000, WO=0x1000000, W1=0x1400000, W2=0x1600000,
    Q=0x2000000, K=0x3000000, VT=0x4000000, O=0x5000000, KMEM=0x6000000, VMEM=0x6800000,
    MEM=0x7800000, SYNC=0x78C0000, PART=0x7900000, AOUT=0x8000000, X1=0x8200000, Y=0x8400000, H1=0x8800000,
)
WS_BYTES = 268435456
RING = 2

def round_bf16(A, x, tmp):
    A.emit(f"v_cvt_pk_bf16_f32 {v(tmp)}, {v(x)}, {v(x)}")
    A.emit(f"v_lshlrev_b32 {v(x)}, 16, {v(tmp)}")

def round_bf16_2(A, x, y, tmp):
    A.emit(f"v_cvt_pk_bf16_f32 {v(tmp)}, {v(x)}, {v(y)}")
    A.emit(f"v_lshlrev_b32 {v(x)}, 16, {v(tmp)}")
    A.emit(f"v_and_b32 {v(y)}, 0xffff0000, {v(tmp)}")

def wave_allreduce(A, op, x, t0, t1):
    for ctrl in ("quad_perm:[1,0,3,2]", "quad_perm:[2,3,0,1]", "row_half_mirror", "row_mirror"):
        A.emit("s_nop 1")
        A.emit(f"{op}_dpp {v(x)}, {v(x)}, {v(x)} {ctrl} row_mask:0xf bank_mask:0xf")
    for sw in ("v_permlane16_swap_b32", "v_permlane32_swap_b32"):
        A.emit(f"v_mov_b32 {v(t0)}, {v(x)}")
        A.emit(f"v_mov_b32 {v(t1)}, {v(x)}")
        A.emit("s_nop 1")
        A.emit(f"{sw} {v(t0)}, {v(t1)}")
        A.emit("s_nop 1")
        A.emit(f"{op} {v(x)}, {v(t0)}, {v(t1)}")

def g_allreduce(A, op, x, t0, t1):
    for sw in ("v_permlane16_swap_b32", "v_permlane32_swap_b32"):
        A.emit(f"v_mov_b32 {v(t0)}, {v(x)}")
        A.emit(f"v_mov_b32 {v(t1)}, {v(x)}")
        A.emit("s_nop 1")
        A.emit(f"{sw} {v(t0)}, {v(t1)}")
        A.emit("s_nop 1")
        A.emit(f"{op} {v(x)}, {v(t0)}, {v(t1)}")

LOG2E = 0x3fb8aa3b

def layernorm8(A, x, t):
    sm, t0, t1, mean, var, d = t, t+1, t+2, t+3, t+4, t+5
    A.emit(f"v_add_f32 {v(sm)}, {v(x)}, {v(x+1)}")
    for i in range(2, 8):
        A.emit(f"v_add_f32 {v(sm)}, {v(sm)}, {v(x+i)}")
    wave_allreduce(A, "v_add_f32", sm, t0, t1)
    A.emit(f"v_mul_f32 {v(mean)}, 0x3b000000, {v(sm)}")
    A.emit(f"v_sub_f32 {v(t0)}, {v(x)}, {v(mean)}")
    A.emit(f"v_mul_f32 {v(sm)}, {v(t0)}, {v(t0)}")
    for i in range(1, 8):
        A.emit(f"v_sub_f32 {v(t0)}, {v(x+i)}, {v(mean)}")
        A.emit(f"v_fmac_f32 {v(sm)}, {v(t0)}, {v(t0)}")
    wave_allreduce(A, "v_add_f32", sm, t0, t1)
    A.emit(f"v_mul_f32 {v(var)}, 0x3b000000, {v(sm)}")
    round_bf16_2(A, mean, var, t0)
    A.emit(f"v_add_f32 {v(d)}, 0x3727c5ac, {v(var)}")
    round_bf16(A, d, t0)
    A.emit(f"v_sqrt_f32 {v(d)}, {v(d)}")
    A.emit("s_nop 0")
    round_bf16(A, d, t0)
    A.emit(f"v_rcp_f32 {v(d)}, {v(d)}")
    for i in range(0, 8, 2):
        A.emit(f"v_sub_f32 {v(x+i)}, {v(x+i)}, {v(mean)}")
        A.emit(f"v_sub_f32 {v(x+i+1)}, {v(x+i+1)}, {v(mean)}")
        round_bf16_2(A, x+i, x+i+1, t0)
        A.emit(f"v_mul_f32 {v(x+i)}, {v(x+i)}, {v(d)}")
        A.emit(f"v_mul_f32 {v(x+i+1)}, {v(x+i+1)}, {v(d)}")
        round_bf16_2(A, x+i, x+i+1, t0)

def unpack8(A, dst, src):
    for i in range(4):
        A.emit(f"v_lshlrev_b32 {v(dst+2*i)}, 16, {v(src+i)}")
        A.emit(f"v_and_b32 {v(dst+2*i+1)}, 0xffff0000, {v(src+i)}")

def pack8(A, dst, src):
    for i in range(4):
        A.emit(f"v_cvt_pk_bf16_f32 {v(dst+i)}, {v(src+2*i)}, {v(src+2*i+1)}")
```

```python
from common import *

N_MOD_WG = 24
N_CLR_WG = 32
REPACK = [
    ("Wq", "Wq", 512, 4096, WS["WQKV"] + 0 * 256 * 16384, 16384, 1024, 0),
    ("Wk", "Wk", 512, 4096, WS["WQKV"] + 1 * 256 * 16384, 16384, 1024, 0),
    ("Wv", "Wv", 512, 4096, WS["WQKV"] + 2 * 256 * 16384, 16384, 1024, 0),
    ("Wo", "Wo", 4096, 512, WS["WO"], 1024, 32768, 1),
    ("w1", "w1", 512, 1792, WS["W1"], 16384, 1024, 0),
    ("w2", "w2", 1792, 512, WS["W2"], 1024, 32768, 1),
]
def repack_wgs():
    out = []
    for (_, _, K, N, *_r) in REPACK:
        units = (K // 32) * (N // 64)
        assert units % 4 == 0
        out.append(units // 4)
    return out
PREP_GRID = N_MOD_WG + N_CLR_WG + sum(repack_wgs())

def gen_prep(A):
    name = "prep_kernel"
    kernel_begin(A, name)
    Lend = "prep_end"
    A.emit("s_load_dwordx2 s[4:5], s[0:1], 128")
    A.emit(f"s_cmp_ge_u32 s2, {PREP_GRID}")
    A.emit(f"s_cbranch_scc1 {Lend}")
    A.emit("v_lshrrev_b32 v1, 6, v0")
    A.emit("v_and_b32 v2, 63, v0")
    A.emit("s_nop 0")
    A.emit("v_readfirstlane_b32 s3, v1")
    A.emit(f"s_cmp_ge_u32 s2, {N_MOD_WG}")
    A.emit("s_cbranch_scc1 prep_not_mod")
    load_ptr(A, 6, "c"); load_ptr(A, 8, "wmod")
    A.emit("s_waitcnt lgkmcnt(0)")
    make_srd(A, 12, 6, 1024)
    make_srd(A, 16, 8, 512 * 3072 * 2)
    make_srd(A, 20, 4, 3072 * 4, WS["MOD"])
    A.emit("s_lshl_b32 s24, s3, 8")
    A.emit("v_lshlrev_b32 v3, 1, v2")
    A.emit("buffer_load_ushort v4, v3, s[12:15], s24 offen")
    A.emit("buffer_load_ushort v5, v3, s[12:15], s24 offen offset:128")
    A.emit("s_waitcnt vmcnt(0)")
    for r in (4, 5):
        A.emit(f"v_lshlrev_b32 v{r}, 16, v{r}")
        A.emit(f"v_mul_f32 v6, 0xbfb8aa3b, v{r}")
        A.emit("v_exp_f32 v6, v6")
        A.emit("s_nop 0")
        A.emit("v_add_f32 v6, 1.0, v6")
        A.emit("v_rcp_f32 v6, v6")
        A.emit("s_nop 0")
        A.emit(f"v_mul_f32 v{r}, v{r}, v6")
        round_bf16(A, r, 6)
    A.emit("s_lshl_b32 s25, s2, 8")
    A.emit("v_lshl_add_u32 v3, v2, 2, s25")
    A.emit("s_mul_i32 s26, s3, 786432")
    A.emit("v_mov_b32 v10, 0")
    A.emit("v_mov_b32 v11, 0")
    for b in range(8):
        for i in range(16):
            A.emit(f"buffer_load_dword v{16+i}, v3, s[16:19], s26 offen")
            A.emit("s_add_u32 s26, s26, 6144")
        for i in range(16):
            row = b * 16 + i
            A.emit(f"v_readlane_b32 s{32+i}, v{4 + (row >> 6)}, {row & 63}")
        A.emit("s_waitcnt vmcnt(0)")
        for i in range(16):
            A.emit(f"v_lshlrev_b32 v12, 16, v{16+i}")
            A.emit(f"v_and_b32 v13, 0xffff0000, v{16+i}")
            A.emit(f"v_fmac_f32 v10, s{32+i}, v12")
            A.emit(f"v_fmac_f32 v11, s{32+i}, v13")
    A.emit("v_lshlrev_b32 v12, 3, v0")
    A.emit("ds_write_b64 v12, v[10:11]")
    A.emit("s_waitcnt lgkmcnt(0)")
    A.emit("s_barrier")
    A.emit("s_cmp_lg_u32 s3, 0")
    A.emit(f"s_cbranch_scc1 {Lend}")
    A.emit("ds_read_b64 v[16:17], v12 offset:512")
    A.emit("ds_read_b64 v[18:19], v12 offset:1024")
    A.emit("ds_read_b64 v[20:21], v12 offset:1536")
    A.emit("s_waitcnt lgkmcnt(0)")
    for r in (16, 18, 20):
        A.emit(f"v_add_f32 v10, v10, v{r}")
        A.emit(f"v_add_f32 v11, v11, v{r+1}")
    round_bf16_2(A, 10, 11, 12)
    A.emit("v_lshlrev_b32 v3, 1, v3")
    A.emit("buffer_store_dwordx2 v[10:11], v3, s[20:23], 0 offen")
    A.emit(f"s_branch {Lend}")
    A.label("prep_not_mod")
    A.emit(f"s_cmp_ge_u32 s2, {N_MOD_WG + N_CLR_WG}")
    A.emit("s_cbranch_scc1 prep_repack")
    load_ptr(A, 6, "mem0")
    A.emit("s_waitcnt lgkmcnt(0)")
    make_srd(A, 12, 4, 65 * 8192, WS["MEM"])
    make_srd(A, 16, 4, RING * 524288, WS["PART"])
    make_srd(A, 20, 6, 8192)
    A.emit(f"s_sub_u32 s24, s2, {N_MOD_WG}")
    A.emit("v_mov_b32 v4, -1"); A.emit("v_mov_b32 v5, -1"); A.emit("v_mov_b32 v6, -1"); A.emit("v_mov_b32 v7, -1")
    A.emit("s_lshl_b32 s25, s24, 14")
    A.emit("s_add_u32 s25, s25, 8192")
    A.emit("v_lshlrev_b32 v3, 4, v0")
    for i in range(4):
        A.emit(f"buffer_store_dwordx4 v[4:7], v3, s[12:15], s25 offen")
        A.emit("s_add_u32 s25, s25, 4096")
    A.emit(f"s_mul_i32 s25, s24, {RING * 16384}")
    for i in range(RING * 4):
        A.emit(f"buffer_store_dwordx4 v[4:7], v3, s[16:19], s25 offen")
        A.emit("s_add_u32 s25, s25, 4096")
    A.emit("s_cmp_ge_u32 s24, 2")
    A.emit(f"s_cbranch_scc1 {Lend}")
    A.emit("s_lshl_b32 s25, s24, 12")
    A.emit("buffer_load_dwordx4 v[8:11], v3, s[20:23], s25 offen")
    A.emit("s_lshl_b32 s26, s24, 8")
    A.emit("v_add_u32 v12, s26, v0")
    A.emit("v_lshrrev_b32 v13, 6, v12")
    A.emit("v_bfe_u32 v14, v12, 1, 5")
    A.emit("v_and_b32 v15, 1, v12")
    A.emit("v_lshlrev_b32 v14, 8, v14")
    A.emit("v_lshl_add_u32 v14, v13, 5, v14")
    A.emit("v_lshl_add_u32 v14, v15, 4, v14")
    A.emit("s_waitcnt vmcnt(0)")
    A.emit("buffer_store_dwordx4 v[8:11], v14, s[12:15], 0 offen")
    A.emit(f"s_branch {Lend}")
    A.label("prep_repack")
    A.emit(f"s_sub_u32 s24, s2, {N_MOD_WG + N_CLR_WG}")
    wgs = repack_wgs()
    base = 0
    for idx, (nm, ptr, K, N, doff, Sct, St, pi) in enumerate(REPACK):
        nxt = f"prep_rp_{idx+1}"
        A.emit(f"s_cmp_ge_u32 s24, {base + wgs[idx]}")
        A.emit(f"s_cbranch_scc1 {nxt}")
        load_ptr(A, 6, ptr)
        A.emit(f"s_sub_u32 s25, s24, {base}")
        A.emit("s_lshl_b32 s25, s25, 2")
        A.emit("s_add_u32 s25, s25, s3")
        nb = N // 64
        if nb & (nb - 1) == 0:
            sh = nb.bit_length() - 1
            A.emit(f"s_lshr_b32 s26, s25, {sh}")
            A.emit(f"s_and_b32 s27, s25, {nb-1}")
        else:
            magic = (1 << 32) // nb + 1
            A.emit(f"s_mul_hi_u32 s26, s25, {magic}")
            A.emit(f"s_mul_i32 s27, s26, {nb}")
            A.emit("s_sub_u32 s27, s25, s27")
        A.emit("s_waitcnt lgkmcnt(0)")
        make_srd(A, 12, 6, K * N * 2)
        A.emit(f"s_mul_i32 s28, s26, {32 * N * 2}")
        A.emit("s_lshl_b32 s29, s27, 7")
        A.emit("s_add_u32 s28, s28, s29")
        A.emit(f"s_mov_b32 s30, {N * 2 * 8}")
        A.emit(f"s_mov_b32 s31, {N * 2}")
        A.emit(f"s_mul_i32 s32, s27, {4 * Sct}")
        A.emit(f"s_mul_i32 s33, s26, {St}")
        A.emit("s_add_u32 s32, s32, s33")
        A.emit(f"s_add_u32 s32, s32, {doff}")
        A.emit(f"s_mov_b32 s33, {Sct}")
        A.emit(f"s_mov_b32 s34, {pi}")
        A.emit("s_branch prep_rp_go")
        A.label(nxt)
        base += wgs[idx]
    A.emit(f"s_branch {Lend}")
    A.label("prep_rp_go")
    make_srd(A, 16, 4, WS_BYTES - 1)
    A.emit("v_lshrrev_b32 v3, 3, v2")
    A.emit("v_mul_lo_u32 v3, v3, s31")
    A.emit("v_and_b32 v4, 7, v2")
    A.emit("v_lshl_add_u32 v3, v4, 4, v3")
    for i in range(4):
        A.emit(f"buffer_load_dwordx4 v[{8+4*i}:{11+4*i}], v3, s[12:15], s28 offen")
        A.emit("s_add_u32 s28, s28, s30")
    A.emit("s_lshl_b32 s35, s3, 12")
    A.emit("v_lshrrev_b32 v3, 3, v2")
    A.emit("v_lshlrev_b32 v3, 7, v3")
    A.emit("v_lshl_add_u32 v3, v4, 4, v3")
    A.emit("v_add_u32 v3, s35, v3")
    A.emit("s_waitcnt vmcnt(0)")
    for i in range(4):
        A.emit(f"ds_write_b128 v3, v[{8+4*i}:{11+4*i}] offset:{1024*i}")
    A.emit("v_lshrrev_b32 v5, 4, v2")
    A.emit("v_bfe_u32 v6, v2, 2, 2")
    A.emit("v_and_b32 v7, 3, v2")
    A.emit("s_cmp_eq_u32 s34, 0")
    A.emit("s_cselect_b32 s36, 3, 2")
    A.emit("s_cselect_b32 s37, 4, 16")
    A.emit("s_lshl_b32 s37, s37, 7")
    A.emit("v_lshlrev_b32 v5, s36, v5")
    A.emit("v_add_u32 v5, v5, v6")
    A.emit("v_lshlrev_b32 v5, 7, v5")
    A.emit("v_lshl_add_u32 v5, v7, 3, v5")
    A.emit("v_add_u32 v5, s35, v5")
    A.emit("v_add_u32 v6, s37, v5")
    A.emit("s_waitcnt lgkmcnt(0)")
    for ct in range(4):
        A.emit(f"ds_read_b64_tr_b16 v[{24+4*ct}:{25+4*ct}], v5 offset:{32*ct}")
        A.emit(f"ds_read_b64_tr_b16 v[{26+4*ct}:{27+4*ct}], v6 offset:{32*ct}")
    A.emit("v_lshlrev_b32 v3, 4, v2")
    A.emit("s_waitcnt lgkmcnt(0)")
    for ct in range(4):
        A.emit(f"buffer_store_dwordx4 v[{24+4*ct}:{27+4*ct}], v3, s[16:19], s32 offen")
        A.emit("s_add_u32 s32, s32, s33")
    A.label(Lend)
    A.emit("s_endpgm")
    return name, kernel_desc(name, 48), f"grid=({PREP_GRID},1,1) block=(256,1,1) lds=16384"

def gen_ln1(A):
    name = "ln1_kernel"
    kernel_begin(A, name)
    A.emit("s_cmp_ge_u32 s2, 128")
    A.emit("s_cbranch_scc1 ln1_end")
    load_ptr(A, 4, "ws"); load_ptr(A, 6, "x")
    A.emit("v_lshrrev_b32 v1, 6, v0")
    A.emit("v_and_b32 v2, 63, v0")
    A.emit("s_nop 0")
    A.emit("v_readfirstlane_b32 s3, v1")
    A.emit("s_waitcnt lgkmcnt(0)")
    make_srd(A, 12, 6, 2048 * 1024)
    make_srd(A, 16, 4, 3072 * 4, WS["MOD"])
    make_srd(A, 20, 4, 2048 * 1024, WS["H"])
    A.emit("v_lshlrev_b32 v3, 5, v2")
    A.emit("buffer_load_dwordx4 v[40:43], v3, s[16:19], 0 offen")
    A.emit("buffer_load_dwordx4 v[44:47], v3, s[16:19], 0 offen offset:16")
    A.emit("buffer_load_dwordx4 v[48:51], v3, s[16:19], 0 offen offset:2048")
    A.emit("buffer_load_dwordx4 v[52:55], v3, s[16:19], 0 offen offset:2064")
    A.emit("s_lshl_b32 s24, s2, 2")
    A.emit("s_add_u32 s24, s24, s3")
    A.emit("s_lshl_b32 s24, s24, 12")
    A.emit("v_lshlrev_b32 v3, 4, v2")
    for i in range(4):
        A.emit(f"buffer_load_dwordx4 v[{60+4*i}:{63+4*i}], v3, s[12:15], s24 offen offset:{1024*i}")
    A.emit("s_waitcnt vmcnt(4)")
    for i in range(0, 8, 2):
        A.emit(f"v_add_f32 v{48+i}, 1.0, v{48+i}")
        A.emit(f"v_add_f32 v{49+i}, 1.0, v{49+i}")
        round_bf16_2(A, 48+i, 49+i, 4)
    for i in range(4):
        A.emit(f"s_waitcnt vmcnt({3-i})")
        unpack8(A, 8, 60 + 4*i)
        layernorm8(A, 8, 20)
        for j in range(0, 8, 2):
            A.emit(f"v_mul_f32 v{8+j}, v{8+j}, v{48+j}")
            A.emit(f"v_mul_f32 v{9+j}, v{9+j}, v{49+j}")
            round_bf16_2(A, 8+j, 9+j, 4)
            A.emit(f"v_add_f32 v{8+j}, v{8+j}, v{40+j}")
            A.emit(f"v_add_f32 v{9+j}, v{9+j}, v{41+j}")
        pack8(A, 80 + 4*i, 8)
        A.emit(f"buffer_store_dwordx4 v[{80+4*i}:{83+4*i}], v3, s[20:23], s24 offen offset:{1024*i}")
    A.label("ln1_end")
    A.emit("s_endpgm")
    return name, kernel_desc(name, 96), "grid=(128,1,1) block=(256,1,1) lds=0"
```

```python
from common import *

def gen_qkv(A):
    name = "qkv_kernel"
    kernel_begin(A, name)
    A.emit("s_cmp_ge_u32 s2, 256")
    A.emit("s_cbranch_scc1 qkv_end")
    load_ptr(A, 4, "ws")
    A.emit("v_lshrrev_b32 v1, 6, v0")
    A.emit("v_and_b32 v2, 63, v0")
    A.emit("s_nop 0")
    A.emit("v_readfirstlane_b32 s3, v1")
    A.emit("s_and_b32 s6, s2, 15")
    A.emit("s_lshr_b32 s7, s2, 4")
    A.emit("s_waitcnt lgkmcnt(0)")
    make_srd(A, 12, 4, 2048 * 1024, WS["H"])
    make_srd(A, 16, 4, 768 * 16384, WS["WQKV"])
    make_srd(A, 20, 4, 3 * 0x1000000, WS["Q"])
    A.emit("v_and_b32 v3, 15, v2")
    A.emit("v_lshrrev_b32 v4, 4, v2")
    A.emit("v_lshlrev_b32 v5, 10, v3")
    A.emit("v_lshl_add_u32 v5, v4, 4, v5")
    A.emit("s_lshl_b32 s24, s6, 17")
    A.emit("s_lshl_b32 s25, s3, 15")
    A.emit("s_add_u32 s24, s24, s25")
    A.emit("v_lshlrev_b32 v6, 4, v2")
    A.emit("v_add_u32 v7, s25, v6")
    for half in range(2):
        for t in range(16):
            A.emit(f"buffer_load_dwordx4 v[{64+4*t}:{67+4*t}], v5, s[12:15], s24 offen offset:{64*t}")
        A.emit("s_add_u32 s24, s24, 16384")
        for t in range(16):
            A.emit(f"s_waitcnt vmcnt({15-t})")
            A.emit(f"ds_write_b128 v7, v[{64+4*t}:{67+4*t}] offset:{half*16384 + t*1024}")
    A.emit("s_mul_i32 s26, s7, 12")
    A.emit("s_mul_i32 s27, s3, 3")
    A.emit("s_add_u32 s26, s26, s27")
    A.emit("s_mov_b32 s27, 0")
    A.emit("s_lshl_b32 s28, s26, 16")
    for c in range(1, 4):
        A.emit(f"s_add_u32 s{28+c}, s28, {16384*c}")
    A.emit("v_mov_b32 v8, v6")
    ACC, AB, BB = 128, 64, 32
    for c in range(4):
        A.emit(f"buffer_load_dwordx4 v[{BB+4*c}:{BB+3+4*c}], v8, s[16:19], s{28+c} offen")
    A.emit("s_waitcnt lgkmcnt(0)")
    A.emit("s_barrier")
    A.label("qkv_group")
    for rt in range(8):
        A.emit(f"ds_read_b128 v[{AB+4*rt}:{AB+3+4*rt}], v6 offset:{rt*16384}" if rt < 4 else
               f"ds_read_b128 v[{AB+4*rt}:{AB+3+4*rt}], v9 offset:{(rt-4)*16384}") if False else None
    A.emit("v_add_u32 v9, 0x10000, v6")
    for rt in range(8):
        base = "v6" if rt < 4 else "v9"
        A.emit(f"ds_read_b128 v[{AB+4*rt}:{AB+3+4*rt}], {base} offset:{(rt&3)*16384}")
    A.emit("s_cmp_ge_u32 s26, 128")
    A.emit("s_cbranch_scc1 qkv_vbody")
    for isv in (0, 1):
        if isv: A.label("qkv_vbody")
        for t in range(16):
            cb, nb = t & 1, (t + 1) & 1
            if t < 15:
                A.emit("v_add_u32 v8, 1024, v8")
            else:
                A.emit("v_mov_b32 v8, v6")
                A.emit("s_cmp_lt_u32 s27, 2")
                A.emit("s_cselect_b32 s33, 0x10000, 0")
                for c in range(4):
                    A.emit(f"s_add_u32 s{28+c}, s{28+c}, s33")
            for c in range(4):
                A.emit(f"buffer_load_dwordx4 v[{BB+16*nb+4*c}:{BB+16*nb+3+4*c}], v8, s[16:19], s{28+c} offen")
            if t < 15:
                for rt in range(8):
                    base = "v6" if rt < 4 else "v9"
                    A.emit(f"ds_read_b128 v[{AB+32*nb+4*rt}:{AB+32*nb+3+4*rt}], {base} offset:{(rt&3)*16384 + (t+1)*1024}")
                A.emit("s_waitcnt vmcnt(4) lgkmcnt(8)")
            else:
                A.emit("s_waitcnt vmcnt(4) lgkmcnt(0)")
            for rt in range(8):
                for c in range(4):
                    d = ACC + (rt * 4 + c) * 4
                    af = f"v[{AB+32*cb+4*rt}:{AB+32*cb+3+4*rt}]"
                    bf = f"v[{BB+16*cb+4*c}:{BB+16*cb+3+4*c}]"
                    src2 = "0" if t == 0 else f"v[{d}:{d+3}]"
                    if isv:
                        A.emit(f"v_mfma_f32_16x16x32_bf16 v[{d}:{d+3}], {af}, {bf}, {src2}")
                    else:
                        A.emit(f"v_mfma_f32_16x16x32_bf16 v[{d}:{d+3}], {bf}, {af}, {src2}")
        A.emit("s_nop 7")
        A.emit("s_nop 1")
        if not isv:
            A.emit("s_lshr_b32 s34, s26, 6")
            A.emit("s_lshl_b32 s34, s34, 24")
            A.emit("s_and_b32 s35, s26, 63")
            A.emit("s_lshl_b32 s35, s35, 7")
            A.emit("s_add_u32 s34, s34, s35")
            A.emit("s_lshl_b32 s35, s6, 20")
            A.emit("s_add_u32 s34, s34, s35")
            A.emit("v_lshlrev_b32 v10, 13, v3")
            A.emit("v_lshl_add_u32 v10, v4, 4, v10")
            for rt in range(8):
                for p in range(2):
                    d0 = ACC + (rt * 4 + 2 * p) * 4
                    o = 12 + 4 * ((rt * 2 + p) & 3)
                    A.emit(f"v_cvt_pk_bf16_f32 v{o}, v{d0}, v{d0+1}")
                    A.emit(f"v_cvt_pk_bf16_f32 v{o+1}, v{d0+2}, v{d0+3}")
                    A.emit(f"v_cvt_pk_bf16_f32 v{o+2}, v{d0+4}, v{d0+5}")
                    A.emit(f"v_cvt_pk_bf16_f32 v{o+3}, v{d0+6}, v{d0+7}")
                    A.emit(f"buffer_store_dwordx4 v[{o}:{o+3}], v10, s[20:23], s34 offen offset:{64*p}")
                A.emit("s_add_u32 s34, s34, 0x20000")
            A.emit("s_branch qkv_next")
        else:
            A.emit("s_sub_u32 s34, s26, 128")
            A.emit("s_lshl_b32 s34, s34, 12")
            A.emit("s_lshl_b32 s35, s6, 20")
            A.emit("s_add_u32 s34, s34, s35")
            A.emit("s_add_u32 s34, s34, 0x2000000")
            A.emit("v_lshlrev_b32 v10, 6, v3")
            A.emit("v_lshl_add_u32 v10, v4, 4, v10")
            for sig in range(4):
                for c in range(4):
                    d0 = ACC + ((2 * sig) * 4 + c) * 4
                    d1 = ACC + ((2 * sig + 1) * 4 + c) * 4
                    o = 12 + 4 * (c & 3)
                    A.emit(f"v_cvt_pk_bf16_f32 v{o}, v{d0}, v{d0+1}")
                    A.emit(f"v_cvt_pk_bf16_f32 v{o+1}, v{d0+2}, v{d0+3}")
                    A.emit(f"v_cvt_pk_bf16_f32 v{o+2}, v{d1}, v{d1+1}")
                    A.emit(f"v_cvt_pk_bf16_f32 v{o+3}, v{d1+2}, v{d1+3}")
                    A.emit(f"buffer_store_dwordx4 v[{o}:{o+3}], v10, s[20:23], s34 offen offset:{1024*c}")
                A.emit("s_add_u32 s34, s34, 0x40000")
    A.label("qkv_next")
    A.emit("s_add_u32 s26, s26, 1")
    A.emit("s_add_u32 s27, s27, 1")
    A.emit("s_cmp_lt_u32 s27, 3")
    A.emit("s_cbranch_scc1 qkv_group")
    A.label("qkv_end")
    A.emit("s_endpgm")
    return name, kernel_desc(name, 256), "grid=(256,1,1) block=(256,1,1) lds=131072"
```

```python
from common import *

SCALE = 0x3DB504F3
SPIN = 200000
LDS_SC = 131072
LDS_OF = LDS_SC + 12288
LDS_MB = LDS_OF + 4096
LDS_TOTAL = LDS_MB + 8192

def sentinel_check(A, base, n, tmp, Lretry, Lok, sspin):
    A.emit(f"v_max3_u32 {v(tmp)}, {v(base)}, {v(base+1)}, {v(base+2)}")
    i = 3
    while i < n:
        if i + 1 < n:
            A.emit(f"v_max3_u32 {v(tmp)}, {v(tmp)}, {v(base+i)}, {v(base+i+1)}"); i += 2
        else:
            A.emit(f"v_max_u32 {v(tmp)}, {v(tmp)}, {v(base+i)}"); i += 1
    A.emit(f"v_cmp_eq_u32 vcc, -1, {v(tmp)}")
    A.emit(f"s_cbranch_vccz {Lok}")
    A.emit(f"s_add_u32 {s(sspin)}, {s(sspin)}, 1")
    A.emit(f"s_cmp_lt_u32 {s(sspin)}, {SPIN}")
    A.emit(f"s_cbranch_scc1 {Lretry}")

def softmax12(A, S, t, smask):
    for i in range(0, 12, 2):
        round_bf16_2(A, S+i, S+i+1, t)
    for i in range(12):
        A.emit(f"v_mul_f32 {v(S+i)}, {SCALE:#x}, {v(S+i)}")
    for i in range(0, 12, 2):
        round_bf16_2(A, S+i, S+i+1, t)
    A.emit(f"v_mov_b32 {v(t)}, 0xff800000")
    for i in range(4):
        A.emit(f"v_cndmask_b32 {v(S+i)}, {v(S+i)}, {v(t)}, {s(smask,2)}")
    A.emit(f"v_max3_f32 {v(t)}, {v(S)}, {v(S+1)}, {v(S+2)}")
    for i in range(3, 11, 2):
        A.emit(f"v_max3_f32 {v(t)}, {v(t)}, {v(S+i)}, {v(S+i+1)}")
    A.emit(f"v_max_f32 {v(t)}, {v(t)}, {v(S+11)}")
    g_allreduce(A, "v_max_f32", t, t+1, t+2)
    for i in range(12):
        A.emit(f"v_sub_f32 {v(S+i)}, {v(S+i)}, {v(t)}")
        A.emit(f"v_mul_f32 {v(S+i)}, {LOG2E:#x}, {v(S+i)}")
        A.emit(f"v_exp_f32 {v(S+i)}, {v(S+i)}")
    A.emit("s_nop 0")
    A.emit(f"v_add_f32 {v(t)}, {v(S)}, {v(S+1)}")
    for i in range(2, 12):
        A.emit(f"v_add_f32 {v(t)}, {v(t)}, {v(S+i)}")
    g_allreduce(A, "v_add_f32", t, t+1, t+2)
    A.emit(f"v_rcp_f32 {v(t)}, {v(t)}")
    A.emit("s_nop 0")
    for i in range(12):
        A.emit(f"v_mul_f32 {v(S+i)}, {v(S+i)}, {v(t)}")

STAMP = False
XCDHACK = False
def stamp(A, i):
    if STAMP:
        A.emit(f"s_memtime s[{60+2*i}:{61+2*i}]")

RV = ["v6", "v60", "v61", "v63"]
def gen_rec(A):
    name = "rec_kernel"
    kernel_begin(A, name)
    if XCDHACK:
        A.emit("s_cmp_ge_u32 s2, 256")
        A.emit("s_cbranch_scc1 rec_end")
        A.emit("s_and_b32 s3, s2, 7")
        A.emit("s_cmp_lg_u32 s3, 0")
        A.emit("s_cbranch_scc1 rec_end")
        A.emit("s_lshr_b32 s2, s2, 3")
    else:
        A.emit("s_cmp_ge_u32 s2, 32")
        A.emit("s_cbranch_scc1 rec_end")
    load_ptr(A, 4, "ws")
    A.emit("v_lshrrev_b32 v1, 6, v0")
    A.emit("v_and_b32 v2, 63, v0")
    A.emit("s_nop 0")
    A.emit("v_readfirstlane_b32 s3, v1")
    A.emit("s_mov_b32 s6, s2")
    A.emit("s_waitcnt lgkmcnt(0)")
    make_srd(A, 12, 4, WS_BYTES - 1)
    A.emit("v_and_b32 v3, 15, v2")
    A.emit("v_lshrrev_b32 v4, 4, v2")
    A.emit("v_and_b32 v5, 7, v2")
    A.emit("v_lshlrev_b32 v5, 5, v5")
    A.emit("v_and_b32 v1, 1, v4")
    A.emit("v_lshl_add_u32 v5, v1, 4, v5")
    A.emit("v_lshrrev_b32 v1, 1, v4")
    A.emit("v_lshl_add_u32 v5, v1, 8, v5")
    A.emit(f"v_add_u32 v5, {LDS_MB}, v5")
    A.emit("v_lshlrev_b32 v6, 4, v2")
    A.emit("v_lshlrev_b32 v7, 13, v3")
    A.emit("v_lshl_add_u32 v7, v4, 4, v7")
    A.emit("v_lshlrev_b32 v8, 6, v3")
    A.emit("v_lshl_add_u32 v8, v4, 4, v8")
    A.emit("v_mov_b32 v1, 0x40000000")
    A.emit("v_cmp_gt_u32 vcc, 8, v3")
    A.emit("s_nop 1")
    A.emit("v_cndmask_b32 v9, v1, v8, vcc")
    A.emit("v_bfe_u32 v10, v2, 2, 3")
    A.emit("v_lshlrev_b32 v10, 5, v10")
    A.emit("v_and_b32 v11, 3, v2")
    A.emit("v_lshl_add_u32 v10, v11, 3, v10")
    A.emit("v_cmp_gt_u32 vcc, 32, v2")
    A.emit("s_nop 1")
    A.emit("v_cndmask_b32 v10, v1, v10, vcc")
    A.emit("v_add_u32 v60, 4096, v6")
    A.emit("v_add_u32 v61, 8192, v6")
    A.emit("v_add_u32 v63, 12288, v6")
    A.emit("s_mov_b32 s40, 0")
    A.emit("s_mov_b32 s41, -1")
    for tau in range(6):
        mat, odd = tau >> 1, tau & 1
        A.emit("s_lshl_b32 s20, s6, 3")
        A.emit("s_lshl_b32 s21, s3, 1")
        A.emit("s_add_u32 s20, s20, s21")
        A.emit(f"s_add_u32 s20, s20, {mat*256 + odd}")
        A.emit("s_lshl_b32 s20, s20, 14")
        A.emit(f"s_add_u32 s20, s20, {WS['WQKV']}")
        for t in range(16):
            dst = a(64*tau + 4*t, 4) if tau < 4 else v(128 + 64*(tau-4) + 4*t, 4)
            A.emit(f"buffer_load_dwordx4 {dst}, v6, s[12:15], s20 offen offset:{(t&3)*1024}")
            if t & 3 == 3:
                A.emit("s_add_u32 s20, s20, 4096")
    A.emit("s_lshl_b32 s20, s6, 17")
    A.emit("s_lshl_b32 s21, s3, 15")
    A.emit("s_add_u32 s20, s20, s21")
    A.emit(f"s_add_u32 s20, s20, {WS['WO']}")
    A.emit("v_add_u32 v11, s21, v6")
    for half in range(2):
        for i in range(16):
            A.emit(f"buffer_load_dwordx4 v[{64+4*i}:{67+4*i}], v6, s[12:15], s20 offen offset:{(i&3)*1024}")
            if i & 3 == 3:
                A.emit("s_add_u32 s20, s20, 4096")
        for i in range(16):
            A.emit(f"s_waitcnt vmcnt({15-i})")
            A.emit(f"ds_write_b128 v11, v[{64+4*i}:{67+4*i}] offset:{half*16384 + i*1024}")
    A.emit("s_lshl_b32 s21, s3, 13")
    A.emit("v_add_u32 v11, s21, v6")
    A.emit("v_add_u32 v0, 0x10000, v11")
    A.emit(f"v_add_u32 v1, {LDS_SC}, v6")
    A.emit("s_mov_b32 s7, 0")
    A.emit(f"s_mov_b32 s22, {WS['MEM']}")
    A.emit("s_lshl_b32 s31, s3, 11")
    A.emit("v_add_u32 v62, s31, v6")
    A.emit(f"v_add_u32 v62, {LDS_MB}, v62")
    A.emit("s_lshl_b32 s23, s6, 8"); A.emit("s_lshl_b32 s20, s3, 6"); A.emit("s_add_u32 s23, s23, s20"); A.emit(f"s_add_u32 s23, s23, {WS['K']}")
    A.emit("s_lshl_b32 s24, s6, 13"); A.emit("s_lshl_b32 s20, s3, 11"); A.emit("s_add_u32 s24, s24, s20"); A.emit(f"s_add_u32 s24, s24, {WS['VT']}")
    A.emit("s_lshl_b32 s25, s6, 12"); A.emit("s_lshl_b32 s20, s3, 10"); A.emit("s_add_u32 s25, s25, s20"); A.emit(f"s_add_u32 s25, s25, {WS['KMEM']}")
    A.emit("s_lshl_b32 s26, s6, 13"); A.emit("s_lshl_b32 s20, s3, 11"); A.emit("s_add_u32 s26, s26, s20"); A.emit(f"s_add_u32 s26, s26, {WS['VMEM']}")
    A.emit("s_lshl_b32 s27, s3, 17"); A.emit("s_lshl_b32 s20, s6, 9"); A.emit("s_add_u32 s27, s27, s20"); A.emit(f"s_add_u32 s27, s27, {WS['PART']}")
    A.emit("s_lshl_b32 s28, s6, 14"); A.emit(f"s_add_u32 s28, s28, {WS['PART']}")
    A.emit("s_mul_i32 s20, s3, 3072")
    A.emit("v_add_u32 v2, s20, v1")
    def prefetch_kv():
        A.emit("s_add_u32 s20, s23, 0x20000")
        A.emit("buffer_load_dwordx4 v[36:39], v7, s[12:15], s23 offen")
        A.emit("buffer_load_dwordx4 v[40:43], v7, s[12:15], s20 offen")
        A.emit("buffer_load_dwordx4 v[44:47], v8, s[12:15], s24 offen")
        A.emit("buffer_load_dwordx4 v[48:51], v8, s[12:15], s24 offen offset:1024")
    prefetch_kv()
    A.emit("s_waitcnt vmcnt(0) lgkmcnt(0)")
    A.emit("s_barrier")
    A.label("rec_step")
    stamp(A,0)
    A.emit("s_mov_b32 s30, 0")
    A.emit("s_add_u32 s21, s22, s31")
    A.label("rec_poll")
    A.emit("buffer_load_dwordx4 v[64:67], v6, s[12:15], s21 offen sc1")
    A.emit("buffer_load_dwordx4 v[68:71], v6, s[12:15], s21 offen offset:1024 sc1")
    A.emit("s_waitcnt vmcnt(0)")
    sentinel_check(A, 64, 8, 52, "rec_poll", "rec_poll_ok", 30)
    A.label("rec_poll_ok")
    A.emit("ds_write_b128 v62, v[64:67]")
    A.emit("ds_write_b128 v62, v[68:71] offset:1024")
    A.emit("s_waitcnt lgkmcnt(0)")
    A.emit("s_barrier")
    stamp(A,1)
    for t in range(16):
        A.emit(f"ds_read_b128 v[{64+4*t}:{67+4*t}], v5 offset:{512*t}")
    A.emit("s_xor_b32 s20, s28, 0x80000")
    A.emit("s_lshl_b32 s21, s3, 12")
    A.emit("s_add_u32 s20, s20, s21")
    for r in range(4):
        A.emit(f"v_mov_b32 v{52+r}, -1")
    for it in range(4):
        A.emit(f"buffer_store_dwordx4 v[52:55], v6, s[12:15], s20 offen offset:{it*1024} sc1")
    for t in range(16):
        A.emit(f"s_waitcnt lgkmcnt({15-t})")
        for tau in range(4):
            d = 12 + 4*tau
            c = "0" if t == 0 else v(d, 4)
            A.emit(f"v_mfma_f32_16x16x32_bf16 {v(d,4)}, {a(64*tau+4*t,4)}, {v(64+4*t,4)}, {c}")
    def vm(t):
        for tp in range(2):
            d = 28 + 4*tp
            c = "0" if t == 0 else v(d, 4)
            A.emit(f"v_mfma_f32_16x16x32_bf16 {v(d,4)}, {v(64+4*t,4)}, {v(128+64*tp+4*t,4)}, {c}")
    vm(0); vm(1)
    A.emit("s_nop 4")
    for i in range(4):
        A.emit(f"v_cvt_pk_bf16_f32 v{52+i}, v{12+2*i}, v{13+2*i}")
    for i in range(4):
        A.emit(f"v_cvt_pk_bf16_f32 v{56+i}, v{20+2*i}, v{21+2*i}")
    A.emit("buffer_store_dwordx4 v[56:59], v6, s[12:15], s25 offen")
    A.emit("s_nop 0")
    A.emit("v_mfma_f32_16x16x32_bf16 v[12:15], v[56:59], v[52:55], 0")
    A.emit("v_mfma_f32_16x16x32_bf16 v[16:19], v[36:39], v[52:55], 0")
    A.emit("v_mfma_f32_16x16x32_bf16 v[20:23], v[40:43], v[52:55], 0")
    vm(2); vm(3); vm(4); vm(5)
    for c in range(3):
        A.emit(f"ds_write_b128 v2, v[{12+4*c}:{15+4*c}] offset:{1024*c}")
    for t in range(6, 16):
        vm(t)
    stamp(A,2)
    A.emit("s_waitcnt lgkmcnt(0)")
    A.emit("s_barrier")
    stamp(A,3)
    for w in range(4):
        for c in range(3):
            A.emit(f"ds_read_b128 v[{64+12*w+4*c}:{67+12*w+4*c}], v1 offset:{3072*w + 1024*c}")
    A.emit("v_cvt_pk_bf16_f32 v52, v28, v29"); A.emit("v_cvt_pk_bf16_f32 v53, v30, v31")
    A.emit("v_mov_b32 v54, 0"); A.emit("v_mov_b32 v55, 0")
    A.emit("v_cvt_pk_bf16_f32 v56, v32, v33"); A.emit("v_cvt_pk_bf16_f32 v57, v34, v35")
    A.emit("v_mov_b32 v58, 0"); A.emit("v_mov_b32 v59, 0")
    A.emit("buffer_store_dwordx4 v[52:55], v6, s[12:15], s26 offen")
    A.emit("buffer_store_dwordx4 v[56:59], v6, s[12:15], s26 offen offset:1024")
    A.emit("s_cmp_eq_u32 s7, 63")
    A.emit("s_cbranch_scc1 rec_end")
    A.emit("s_waitcnt lgkmcnt(0)")
    for i in range(12):
        A.emit(f"v_add_f32 v{12+i}, v{64+i}, v{76+i}")
        A.emit(f"v_add_f32 v{12+i}, v{12+i}, v{88+i}")
        A.emit(f"v_add_f32 v{12+i}, v{12+i}, v{100+i}")
    def wo_read(c):
        for u in range(4):
            base = "v11" if u < 2 else "v0"
            st = 64 + 16*(c & 1) + 4*u
            A.emit(f"ds_read_b128 v[{st}:{st+3}], {base} offset:{(u&1)*32768 + c*1024}")
    wo_read(0); wo_read(1)
    softmax12(A, 12, 24, 40)
    for i in range(4):
        A.emit(f"v_cvt_pk_bf16_f32 v{28+i}, v{16+2*i}, v{17+2*i}")
    A.emit("v_cvt_pk_bf16_f32 v32, v12, v13"); A.emit("v_cvt_pk_bf16_f32 v33, v14, v15")
    A.emit("v_mov_b32 v34, 0"); A.emit("v_mov_b32 v35, 0")
    A.emit("s_nop 1")
    A.emit("v_mfma_f32_16x16x32_bf16 v[12:15], v[44:47], v[28:31], 0")
    A.emit("v_mfma_f32_16x16x32_bf16 v[16:19], v[48:51], v[28:31], 0")
    A.emit("v_mfma_f32_16x16x32_bf16 v[12:15], v[52:55], v[32:35], v[12:15]")
    A.emit("v_mfma_f32_16x16x32_bf16 v[16:19], v[56:59], v[32:35], v[16:19]")
    A.emit("s_add_u32 s23, s23, 0x40000")
    A.emit("s_add_u32 s24, s24, 0x40000")
    A.emit("s_add_u32 s25, s25, 0x20000")
    A.emit("s_add_u32 s26, s26, 0x40000")
    A.emit("s_nop 7")
    for i in range(4):
        A.emit(f"v_cvt_pk_bf16_f32 v{20+i}, v{12+2*i}, v{13+2*i}")
    A.emit("s_lshl_b32 s20, s3, 10")
    A.emit("v_add_u32 v24, s20, v6")
    A.emit(f"ds_write_b128 v24, v[20:23] offset:{LDS_OF - 0x10000}" if False else f"v_add_u32 v24, {LDS_OF}, v24")
    A.emit("ds_write_b128 v24, v[20:23]")
    stamp(A,4)
    A.emit("s_waitcnt vmcnt(0) lgkmcnt(0)")
    A.emit("s_barrier")
    stamp(A,5)
    prefetch_kv()
    A.emit(f"v_add_u32 v24, {LDS_OF}, v6")
    for u in range(4):
        A.emit(f"ds_read_b128 v[{12+4*u}:{15+4*u}], v24 offset:{1024*u}")
    A.emit("s_waitcnt lgkmcnt(0)")
    A.emit("s_mov_b32 s20, s27")
    for c in range(8):
        if c >= 2:
            A.emit("s_waitcnt lgkmcnt(4)" if c < 7 else "s_waitcnt lgkmcnt(0)")
        d = 96 + 4*c
        for u in range(4):
            st = 64 + 16*(c & 1) + 4*u
            cc = "0" if u == 0 else v(d, 4)
            A.emit(f"v_mfma_f32_16x16x32_bf16 {v(d,4)}, {v(st,4)}, {v(12+4*u,4)}, {cc}")
        if c + 2 < 8:
            wo_read(c + 2)
        if c >= 2:
            A.emit(f"buffer_store_dwordx4 {v(96+4*(c-2),4)}, v9, s[12:15], s20 offen sc1")
            A.emit("s_add_u32 s20, s20, 16384")
    A.emit("s_nop 7")
    for c in (6, 7):
        A.emit(f"buffer_store_dwordx4 {v(96+4*c,4)}, v9, s[12:15], s20 offen sc1")
        A.emit("s_add_u32 s20, s20, 16384")
    stamp(A,6)
    A.emit("s_cmp_lg_u32 s3, 0")
    A.emit("s_cbranch_scc1 rec_next")
    A.emit("s_mov_b32 s30, 0")
    A.label("rec_rpoll")
    for it in range(16):
        A.emit(f"buffer_load_dwordx4 v[{64+4*it}:{67+4*it}], {RV[it>>2]}, s[12:15], s28 offen offset:{(it&3)*1024} sc1")
    A.emit("s_waitcnt vmcnt(0)")
    sentinel_check(A, 64, 64, 52, "rec_rpoll", "rec_rpoll_ok", 30)
    A.label("rec_rpoll_ok")
    stamp(A,7)
    for r in range(4):
        A.emit(f"v_add_f32 v{12+r}, v{64+r}, v{68+r}")
    for it in range(2, 16):
        for r in range(4):
            A.emit(f"v_add_f32 v{12+r}, v{12+r}, v{64+4*it+r}")
    for r in range(4):
        A.emit(f"v_mov_b32 v{16+r}, v{12+r}")
    A.emit("s_nop 1")
    for r in range(4):
        A.emit(f"v_permlane32_swap_b32 v{12+r}, v{16+r}")
    A.emit("s_nop 1")
    for r in range(4):
        A.emit(f"v_add_f32 v{12+r}, v{12+r}, v{16+r}")
    A.emit("v_cvt_pk_bf16_f32 v16, v12, v13")
    A.emit("v_cvt_pk_bf16_f32 v17, v14, v15")
    A.emit("s_lshl_b32 s20, s6, 8")
    A.emit("s_add_u32 s20, s20, s22")
    A.emit("s_add_u32 s20, s20, 8192")
    A.emit("buffer_store_dwordx2 v[16:17], v10, s[12:15], s20 offen sc1")
    stamp(A,8)
    if STAMP:
        A.emit("s_cmp_lg_u32 s7, 10")
        A.emit("s_cbranch_scc1 rec_next")
        A.emit("s_load_dwordx2 s[44:45], s[0:1], 120")
        A.emit("s_waitcnt lgkmcnt(0)")
        make_srd(A, 48, 44, 256)
        A.emit("s_cmp_lg_u32 s6, 0")
        A.emit("s_cbranch_scc1 rec_next")
        for i in range(9):
            A.emit(f"v_mov_b32 v12, s{60+2*i}")
            A.emit(f"v_mov_b32 v13, {4*i}")
            A.emit("buffer_store_dword v12, v13, s[48:51], 0 offen")
        A.emit("v_mov_b32 v12, s30")
        A.emit("v_mov_b32 v13, 40")
        A.emit("buffer_store_dword v12, v13, s[48:51], 0 offen")
    A.label("rec_next")
    A.emit("s_add_u32 s7, s7, 1")
    A.emit("s_add_u32 s22, s22, 8192")
    A.emit("s_xor_b32 s27, s27, 0x80000")
    A.emit("s_xor_b32 s28, s28, 0x80000")
    A.emit("s_branch rec_step")
    A.label("rec_end")
    A.emit("s_endpgm")
    if XCDHACK:
        A.lines = [ (ln[:-4] if ("buffer_store" in ln and ln.endswith(" sc1")) else ln) for ln in A.lines]
    return name, kernel_desc(name, 256, agpr=256), f"grid=({256 if XCDHACK else 32},1,1) block=(256,1,1) lds={LDS_TOTAL}"
```

```python
from common import *
from k_rec import SCALE

def gen_attn(A):
    name = "attn_kernel"
    kernel_begin(A, name)
    A.emit("s_cmp_ge_u32 s2, 512")
    A.emit("s_cbranch_scc1 attn_end")
    load_ptr(A, 4, "ws")
    A.emit("v_lshrrev_b32 v1, 6, v0")
    A.emit("v_and_b32 v2, 63, v0")
    A.emit("s_nop 0")
    A.emit("v_readfirstlane_b32 s3, v1")
    A.emit("s_lshl_b32 s6, s2, 2")
    A.emit("s_add_u32 s6, s6, s3")
    A.emit("s_lshr_b32 s7, s6, 5")
    A.emit("s_and_b32 s8, s6, 31")
    A.emit("s_waitcnt lgkmcnt(0)")
    make_srd(A, 12, 4, WS_BYTES - 1)
    A.emit("v_and_b32 v3, 15, v2")
    A.emit("v_lshrrev_b32 v4, 4, v2")
    A.emit("v_lshlrev_b32 v6, 4, v2")
    A.emit("v_lshlrev_b32 v7, 13, v3")
    A.emit("v_lshl_add_u32 v7, v4, 4, v7")
    A.emit("v_lshlrev_b32 v8, 6, v3")
    A.emit("v_lshl_add_u32 v8, v4, 4, v8")
    A.emit("s_lshl_b32 s20, s7, 18")
    A.emit("s_lshl_b32 s21, s8, 8")
    A.emit("s_add_u32 s20, s20, s21")
    QF, KF, KM, VT, VM = 32, 64, 96, 112, 144
    A.emit(f"s_add_u32 s22, s20, {WS['Q']}")
    A.emit(f"s_add_u32 s23, s20, {WS['Q'] + 0x20000}")
    A.emit(f"s_add_u32 s24, s20, {WS['K']}")
    A.emit(f"s_add_u32 s25, s20, {WS['K'] + 0x20000}")
    for tl in range(2):
        for u in range(4):
            A.emit(f"buffer_load_dwordx4 {v(QF+16*tl+4*u,4)}, v7, s[12:15], s{22+tl} offen offset:{64*u}")
    for tl in range(2):
        for u in range(4):
            A.emit(f"buffer_load_dwordx4 {v(KF+16*tl+4*u,4)}, v7, s[12:15], s{24+tl} offen offset:{64*u}")
    A.emit("s_lshl_b32 s26, s6, 12")
    A.emit(f"s_add_u32 s26, s26, {WS['KMEM']}")
    for u in range(4):
        A.emit(f"buffer_load_dwordx4 {v(KM+4*u,4)}, v6, s[12:15], s26 offen offset:{1024*u}")
    A.emit("s_lshl_b32 s27, s6, 13")
    A.emit(f"s_add_u32 s28, s27, {WS['VT']}")
    A.emit(f"s_add_u32 s29, s27, {WS['VT'] + 4096}")
    for T in range(8):
        A.emit(f"buffer_load_dwordx4 {v(VT+4*T,4)}, v8, s[12:15], s{28+(T>>2)} offen offset:{1024*(T&3)}")
    A.emit(f"s_add_u32 s30, s27, {WS['VMEM']}")
    A.emit(f"s_add_u32 s31, s27, {WS['VMEM'] + 4096}")
    for T in range(8):
        A.emit(f"buffer_load_dwordx4 {v(VM+4*T,4)}, v6, s[12:15], s{30+(T>>2)} offen offset:{1024*(T&3)}")
    A.emit("s_mov_b32 s40, 0")
    A.emit("s_mov_b32 s41, -1")
    A.emit("v_lshlrev_b32 v9, 2, v4")
    for r in range(4):
        A.emit(f"v_add_u32 v10, {r}, v9")
        A.emit(f"v_cmp_gt_u32 s[{44+2*r}:{45+2*r}], v10, v3")
    A.emit("s_waitcnt vmcnt(16)")
    SB = 176
    for qt in range(2):
        for kt in range(3):
            if qt == 0 and kt == 2: continue
            d = SB + 12*qt + 4*kt
            for u in range(4):
                af = v(KM+4*u,4) if kt == 0 else v(KF+16*(kt-1)+4*u,4)
                c = "0" if u == 0 else v(d,4)
                A.emit(f"v_mfma_f32_16x16x32_bf16 {v(d,4)}, {af}, {v(QF+16*qt+4*u,4)}, {c}")
    A.emit("s_nop 7")
    PF = 200
    T0 = 12
    for qt in range(2):
        S = SB + 12*qt
        n = 8 if qt == 0 else 12
        for i in range(0, n, 2):
            round_bf16_2(A, S+i, S+i+1, T0)
        for i in range(n):
            A.emit(f"v_mul_f32 {v(S+i)}, {SCALE:#x}, {v(S+i)}")
        for i in range(0, n, 2):
            round_bf16_2(A, S+i, S+i+1, T0)
        A.emit(f"v_mov_b32 {v(T0)}, 0xff800000")
        for i in range(4):
            A.emit(f"v_cndmask_b32 {v(S+i)}, {v(S+i)}, {v(T0)}, s[40:41]")
        dg = S + 4 + 4*qt
        for r in range(4):
            A.emit(f"v_cndmask_b32 {v(dg+r)}, {v(dg+r)}, {v(T0)}, s[{44+2*r}:{45+2*r}]")
        A.emit(f"v_max3_f32 {v(T0)}, {v(S)}, {v(S+1)}, {v(S+2)}")
        i = 3
        while i < n:
            if i + 1 < n:
                A.emit(f"v_max3_f32 {v(T0)}, {v(T0)}, {v(S+i)}, {v(S+i+1)}"); i += 2
            else:
                A.emit(f"v_max_f32 {v(T0)}, {v(T0)}, {v(S+i)}"); i += 1
        g_allreduce(A, "v_max_f32", T0, T0+1, T0+2)
        for i in range(n):
            A.emit(f"v_sub_f32 {v(S+i)}, {v(S+i)}, {v(T0)}")
            A.emit(f"v_mul_f32 {v(S+i)}, {LOG2E:#x}, {v(S+i)}")
            A.emit(f"v_exp_f32 {v(S+i)}, {v(S+i)}")
        A.emit("s_nop 0")
        A.emit(f"v_add_f32 {v(T0)}, {v(S)}, {v(S+1)}")
        for i in range(2, n):
            A.emit(f"v_add_f32 {v(T0)}, {v(T0)}, {v(S+i)}")
        g_allreduce(A, "v_add_f32", T0, T0+1, T0+2)
        A.emit(f"v_rcp_f32 {v(T0)}, {v(T0)}")
        A.emit("s_nop 0")
        for i in range(n):
            A.emit(f"v_mul_f32 {v(S+i)}, {v(S+i)}, {v(T0)}")
        p0 = PF + 8*qt
        A.emit(f"v_cvt_pk_bf16_f32 {v(p0)}, {v(S+4)}, {v(S+5)}")
        A.emit(f"v_cvt_pk_bf16_f32 {v(p0+1)}, {v(S+6)}, {v(S+7)}")
        if qt == 0:
            A.emit(f"v_mov_b32 {v(p0+2)}, 0"); A.emit(f"v_mov_b32 {v(p0+3)}, 0")
        else:
            A.emit(f"v_cvt_pk_bf16_f32 {v(p0+2)}, {v(S+8)}, {v(S+9)}")
            A.emit(f"v_cvt_pk_bf16_f32 {v(p0+3)}, {v(S+10)}, {v(S+11)}")
        A.emit(f"v_cvt_pk_bf16_f32 {v(p0+4)}, {v(S)}, {v(S+1)}")
        A.emit(f"v_cvt_pk_bf16_f32 {v(p0+5)}, {v(S+2)}, {v(S+3)}")
        A.emit(f"v_mov_b32 {v(p0+6)}, 0"); A.emit(f"v_mov_b32 {v(p0+7)}, 0")
    A.emit("s_waitcnt vmcnt(0)")
    A.emit("s_nop 1")
    for qt in range(2):
        for T in range(8):
            d = 32 + (qt*8 + T)*4
            A.emit(f"v_mfma_f32_16x16x32_bf16 {v(d,4)}, {v(VT+4*T,4)}, {v(PF+8*qt,4)}, 0")
        for T in range(8):
            d = 32 + (qt*8 + T)*4
            A.emit(f"v_mfma_f32_16x16x32_bf16 {v(d,4)}, {v(VM+4*T,4)}, {v(PF+8*qt+4,4)}, {v(d,4)}")
    A.emit("s_nop 7")
    A.emit(f"s_add_u32 s22, s20, {WS['O']}")
    A.emit(f"s_add_u32 s23, s20, {WS['O'] + 0x20000}")
    for qt in range(2):
        for u in range(4):
            d = 32 + (qt*8 + 2*u)*4
            o = 176 + 4*(qt*4+u)
            for i in range(4):
                A.emit(f"v_cvt_pk_bf16_f32 {v(o+i)}, {v(d+2*i)}, {v(d+2*i+1)}")
            A.emit(f"buffer_store_dwordx4 {v(o,4)}, v7, s[12:15], s{22+qt} offen offset:{64*u}")
    A.label("attn_end")
    A.emit("s_endpgm")
    return name, kernel_desc(name, 216), "grid=(512,1,1) block=(256,1,1) lds=0"


def gen_gemm_splitk(A, name, a_off, a_pitch, w_off, ksteps, epi):
    assert ksteps % 4 == 0
    kw = ksteps // 4
    kernel_begin(A, name)
    A.emit("s_cmp_ge_u32 s2, 256")
    A.emit(f"s_cbranch_scc1 {name}_end")
    load_ptr(A, 4, "ws"); load_ptr(A, 8, "out"); load_ptr(A, 10, "b2")
    A.emit("v_lshrrev_b32 v1, 6, v0")
    A.emit("v_and_b32 v2, 63, v0")
    A.emit("s_nop 0")
    A.emit("v_readfirstlane_b32 s3, v1")
    A.emit("s_lshr_b32 s6, s2, 3")
    A.emit("s_and_b32 s7, s2, 7")
    A.emit("s_waitcnt lgkmcnt(0)")
    make_srd(A, 12, 4, WS_BYTES - 1)
    A.emit("v_and_b32 v3, 15, v2")
    A.emit("v_lshrrev_b32 v4, 4, v2")
    A.emit("v_lshlrev_b32 v6, 4, v2")
    A.emit(f"s_mov_b32 s20, {a_pitch}")
    A.emit("v_mul_lo_u32 v7, v3, s20")
    A.emit("v_lshl_add_u32 v7, v4, 4, v7")
    A.emit(f"s_mul_i32 s21, s6, {64*a_pitch}")
    A.emit(f"s_mul_i32 s22, s3, {kw*64}")
    A.emit("s_add_u32 s21, s21, s22")
    A.emit(f"s_add_u32 s24, s21, {a_off}")
    for rt in range(1, 4):
        A.emit(f"s_add_u32 s{24+rt}, s24, {16*rt*a_pitch}")
    A.emit(f"s_mul_i32 s28, s3, {kw*32768}")
    A.emit("s_lshl_b32 s29, s7, 12")
    A.emit("s_add_u32 s28, s28, s29")
    A.emit(f"s_add_u32 s28, s28, {w_off}")
    AB, BB, ACC = 32, 64, 128
    def loads(buf):
        for rt in range(4):
            A.emit(f"buffer_load_dwordx4 {v(AB+16*buf+4*rt,4)}, v7, s[12:15], s{24+rt} offen")
        for c in range(4):
            A.emit(f"buffer_load_dwordx4 {v(BB+16*buf+4*c,4)}, v6, s[12:15], s28 offen offset:{1024*c}")
        A.emit("v_add_u32 v7, 64, v7")
        A.emit("s_add_u32 s28, s28, 32768")
    for i in range(64):
        A.emit(f"v_mov_b32 v{ACC+i}, 0")
    loads(0)
    A.emit("s_mov_b32 s30, 0")
    A.label(f"{name}_loop")
    for buf in range(2):
        loads(1 - buf)
        A.emit("s_waitcnt vmcnt(8)")
        for rt in range(4):
            for c in range(4):
                d = ACC + (rt*4 + c)*4
                A.emit(f"v_mfma_f32_16x16x32_bf16 {v(d,4)}, {v(BB+16*buf+4*c,4)}, {v(AB+16*buf+4*rt,4)}, {v(d,4)}")
    A.emit("s_add_u32 s30, s30, 2")
    A.emit(f"s_cmp_lt_u32 s30, {kw}")
    A.emit(f"s_cbranch_scc1 {name}_loop")
    assert kw % 2 == 0
    A.emit("s_nop 7")
    A.emit("s_lshl_b32 s21, s3, 14")
    A.emit("v_add_u32 v8, s21, v6")
    for i in range(16):
        A.emit(f"ds_write_b128 v8, {v(ACC+4*i,4)} offset:{1024*i}")
    A.emit("s_waitcnt vmcnt(0) lgkmcnt(0)")
    A.emit("s_barrier")
    A.emit("s_lshl_b32 s21, s3, 12")
    A.emit("v_add_u32 v8, s21, v6")
    for w in range(4):
        for c in range(4):
            A.emit(f"ds_read_b128 {v(32+16*w+4*c,4)}, v8 offset:{16384*w + 1024*c}")
    A.emit("s_waitcnt lgkmcnt(0)")
    for i in range(16):
        A.emit(f"v_add_f32 v{32+i}, v{32+i}, v{48+i}")
        A.emit(f"v_add_f32 v{32+i}, v{32+i}, v{64+i}")
        A.emit(f"v_add_f32 v{32+i}, v{32+i}, v{80+i}")
    A.emit("s_lshl_b32 s21, s6, 6")
    A.emit("s_lshl_b32 s22, s3, 4")
    A.emit("s_add_u32 s21, s21, s22")
    A.emit("s_lshl_b32 s21, s21, 10")
    A.emit("s_lshl_b32 s22, s7, 7")
    A.emit("s_add_u32 s21, s21, s22")
    A.emit("v_lshlrev_b32 v9, 10, v3")
    A.emit("v_lshl_add_u32 v9, v4, 3, v9")
    if epi == "aout":
        A.emit(f"s_add_u32 s21, s21, {WS['AOUT']}")
        for c in range(4):
            A.emit(f"v_cvt_pk_bf16_f32 v{48+2*c}, v{32+4*c}, v{33+4*c}")
            A.emit(f"v_cvt_pk_bf16_f32 v{49+2*c}, v{34+4*c}, v{35+4*c}")
            A.emit(f"buffer_store_dwordx2 {v(48+2*c,2)}, v9, s[12:15], s21 offen offset:{32*c}")
    else:
        make_srd(A, 16, 8, 2048*1024)
        make_srd(A, 36, 10, 1024)
        A.emit(f"s_add_u32 s23, s21, {WS['X1']}")
        A.emit("v_lshlrev_b32 v10, 3, v4")
        A.emit("v_lshlrev_b32 v11, 4, v4")
        A.emit("s_lshl_b32 s24, s7, 8")
        A.emit(f"s_add_u32 s24, s24, {WS['MOD'] + 2560*4}")
        for c in range(4):
            A.emit(f"buffer_load_dwordx2 {v(48+2*c,2)}, v9, s[12:15], s23 offen offset:{32*c}")
            A.emit(f"buffer_load_dwordx2 {v(56+2*c,2)}, v10, s[36:39], s22 offen offset:{32*c}")
            A.emit(f"buffer_load_dwordx4 {v(64+4*c,4)}, v11, s[12:15], s24 offen offset:{64*c}")
        A.emit("s_waitcnt vmcnt(0)")
        for c in range(4):
            for hlf in range(2):
                x0, x1 = 32+4*c+2*hlf, 33+4*c+2*hlf
                round_bf16_2(A, x0, x1, 12)
                A.emit(f"v_lshlrev_b32 v13, 16, v{56+2*c+hlf}")
                A.emit(f"v_and_b32 v14, 0xffff0000, v{56+2*c+hlf}")
                A.emit(f"v_add_f32 v{x0}, v{x0}, v13"); A.emit(f"v_add_f32 v{x1}, v{x1}, v14")
                round_bf16_2(A, x0, x1, 12)
                A.emit(f"v_mul_f32 v{x0}, v{x0}, v{64+4*c+2*hlf}"); A.emit(f"v_mul_f32 v{x1}, v{x1}, v{65+4*c+2*hlf}")
                round_bf16_2(A, x0, x1, 12)
                A.emit(f"v_lshlrev_b32 v13, 16, v{48+2*c+hlf}")
                A.emit(f"v_and_b32 v14, 0xffff0000, v{48+2*c+hlf}")
                A.emit(f"v_add_f32 v{x0}, v{x0}, v13"); A.emit(f"v_add_f32 v{x1}, v{x1}, v14")
                A.emit(f"v_cvt_pk_bf16_f32 v{80+2*c+hlf}, v{x0}, v{x1}")
            A.emit(f"buffer_store_dwordx2 {v(80+2*c,2)}, v9, s[16:19], s21 offen offset:{32*c}")
    A.label(f"{name}_end")
    A.emit("s_endpgm")
    return name, kernel_desc(name, 192), "grid=(256,1,1) block=(256,1,1) lds=65536"

def gen_oproj(A):
    return gen_gemm_splitk(A, "oproj_kernel", WS["O"], 8192, WS["WO"], 128, "aout")
def gen_mlp2(A):
    return gen_gemm_splitk(A, "mlp2_kernel", WS["H1"], 3584, WS["W2"], 56, "out")


def gen_mlp1(A):
    name = "mlp1_kernel"
    kernel_begin(A, name)
    A.emit("s_cmp_ge_u32 s2, 224")
    A.emit("s_cbranch_scc1 mlp1_end")
    load_ptr(A, 4, "ws"); load_ptr(A, 8, "x"); load_ptr(A, 10, "b1")
    A.emit("v_lshrrev_b32 v1, 6, v0")
    A.emit("v_and_b32 v2, 63, v0")
    A.emit("s_nop 0")
    A.emit("v_readfirstlane_b32 s3, v1")
    A.emit("s_and_b32 s6, s2, 15")
    A.emit("s_lshr_b32 s7, s2, 4")
    A.emit("s_waitcnt lgkmcnt(0)")
    make_srd(A, 12, 4, WS_BYTES - 1)
    make_srd(A, 16, 8, 2048*1024)
    make_srd(A, 36, 10, 1792*2)
    A.emit("v_and_b32 v3, 15, v2")
    A.emit("v_lshrrev_b32 v4, 4, v2")
    A.emit("v_lshlrev_b32 v6, 4, v2")
    A.emit("v_lshlrev_b32 v5, 5, v2")
    for k, idx in enumerate((2, 3, 4)):
        A.emit(f"s_mov_b32 s20, {WS['MOD'] + idx*2048}")
        A.emit(f"buffer_load_dwordx4 {v(40+8*k,4)}, v5, s[12:15], s20 offen")
        A.emit(f"buffer_load_dwordx4 {v(44+8*k,4)}, v5, s[12:15], s20 offen offset:16")
    A.emit("s_waitcnt vmcnt(0)")
    for i in range(0, 8, 2):
        A.emit(f"v_add_f32 v{56+i}, 1.0, v{56+i}"); A.emit(f"v_add_f32 v{57+i}, 1.0, v{57+i}")
        round_bf16_2(A, 56+i, 57+i, 12)
    A.emit("s_lshl_b32 s21, s6, 17")
    A.emit("s_lshl_b32 s22, s3, 15")
    A.emit("s_add_u32 s21, s21, s22")
    A.emit("v_lshrrev_b32 v7, 2, v2")
    A.emit("v_lshlrev_b32 v7, 10, v7")
    A.emit("v_and_b32 v8, 3, v2")
    A.emit("v_lshl_add_u32 v7, v8, 8, v7")
    A.emit("v_add_u32 v7, s22, v7")
    A.emit("s_mov_b32 s23, 0")
    A.label("mlp1_rows")
    A.emit(f"s_add_u32 s24, s21, {WS['AOUT']}")
    A.emit("buffer_load_dwordx4 v[64:67], v6, s[16:19], s21 offen")
    A.emit("buffer_load_dwordx4 v[68:71], v6, s[12:15], s24 offen")
    A.emit("s_waitcnt vmcnt(0)")
    unpack8(A, 8+8, 64)
    unpack8(A, 24, 68)
    for i in range(0, 8, 2):
        A.emit(f"v_mul_f32 v{24+i}, v{24+i}, v{40+i}"); A.emit(f"v_mul_f32 v{25+i}, v{25+i}, v{41+i}")
        round_bf16_2(A, 24+i, 25+i, 12)
        A.emit(f"v_add_f32 v{16+i}, v{16+i}, v{24+i}"); A.emit(f"v_add_f32 v{17+i}, v{17+i}, v{25+i}")
        round_bf16_2(A, 16+i, 17+i, 12)
    A.emit("s_cmp_lg_u32 s7, 0")
    A.emit("s_cbranch_scc1 mlp1_nox1")
    pack8(A, 72, 16)
    A.emit(f"s_add_u32 s24, s21, {WS['X1']}")
    A.emit("buffer_store_dwordx4 v[72:75], v6, s[12:15], s24 offen")
    A.label("mlp1_nox1")
    layernorm8(A, 16, 32)
    for i in range(0, 8, 2):
        A.emit(f"v_mul_f32 v{16+i}, v{16+i}, v{56+i}"); A.emit(f"v_mul_f32 v{17+i}, v{17+i}, v{57+i}")
        round_bf16_2(A, 16+i, 17+i, 12)
        A.emit(f"v_add_f32 v{16+i}, v{16+i}, v{48+i}"); A.emit(f"v_add_f32 v{17+i}, v{17+i}, v{49+i}")
        round_bf16_2(A, 16+i, 17+i, 12)
    layernorm8(A, 16, 32)
    pack8(A, 76, 16)
    A.emit("s_lshr_b32 s24, s23, 4"); A.emit("s_lshl_b32 s24, s24, 14")
    A.emit("s_and_b32 s25, s23, 15"); A.emit("s_lshl_b32 s25, s25, 4")
    A.emit("s_add_u32 s24, s24, s25")
    A.emit("v_add_u32 v9, s24, v7")
    A.emit("ds_write_b128 v9, v[76:79]")
    A.emit("s_add_u32 s21, s21, 1024")
    A.emit("s_add_u32 s23, s23, 1")
    A.emit("s_cmp_lt_u32 s23, 32")
    A.emit("s_cbranch_scc1 mlp1_rows")
    A.emit("s_lshl_b32 s26, s7, 2"); A.emit("s_add_u32 s26, s26, s3")
    A.emit("s_lshl_b32 s28, s26, 15")
    A.emit(f"s_add_u32 s28, s28, {WS['W1']}")
    A.emit("s_add_u32 s29, s28, 16384")
    BB, AB, ACC = 32, 64, 128
    A.emit("v_mov_b32 v8, v6")
    for c in range(2):
        A.emit(f"buffer_load_dwordx4 {v(BB+4*c,4)}, v8, s[12:15], s{28+c} offen")
    A.emit("s_waitcnt lgkmcnt(0)")
    A.emit("s_barrier")
    A.emit("v_add_u32 v9, 0x10000, v6")
    for rt in range(8):
        base = "v6" if rt < 4 else "v9"
        A.emit(f"ds_read_b128 {v(AB+4*rt,4)}, {base} offset:{(rt&3)*16384}")
    for t in range(16):
        cb, nb = t & 1, (t + 1) & 1
        if t < 15:
            A.emit("v_add_u32 v8, 1024, v8")
            for c in range(2):
                A.emit(f"buffer_load_dwordx4 {v(BB+8*nb+4*c,4)}, v8, s[12:15], s{28+c} offen")
            for rt in range(8):
                base = "v6" if rt < 4 else "v9"
                A.emit(f"ds_read_b128 {v(AB+32*nb+4*rt,4)}, {base} offset:{(rt&3)*16384 + (t+1)*1024}")
            A.emit("s_waitcnt vmcnt(2) lgkmcnt(8)")
        else:
            A.emit("s_waitcnt vmcnt(0) lgkmcnt(0)")
        for rt in range(8):
            for c in range(2):
                d = ACC + (rt*2 + c)*4
                src2 = "0" if t == 0 else v(d,4)
                A.emit(f"v_mfma_f32_16x16x32_bf16 {v(d,4)}, {v(BB+8*cb+4*c,4)}, {v(AB+32*cb+4*rt,4)}, {src2}")
    A.emit("s_lshl_b32 s24, s26, 6")
    A.emit("v_lshlrev_b32 v10, 3, v4")
    A.emit("buffer_load_dwordx2 v[12:13], v10, s[36:39], s24 offen")
    A.emit("buffer_load_dwordx2 v[14:15], v10, s[36:39], s24 offen offset:32")
    A.emit("s_waitcnt vmcnt(0)")
    for i in range(4):
        A.emit(f"v_lshlrev_b32 v{16+2*i}, 16, v{12+i}")
        A.emit(f"v_and_b32 v{17+2*i}, 0xffff0000, v{12+i}")
    A.emit("s_mov_b32 s20, 3584")
    A.emit("v_mul_lo_u32 v10, v3, s20")
    A.emit("v_lshl_add_u32 v10, v4, 4, v10")
    A.emit(f"s_mul_i32 s25, s6, {128*3584}")
    A.emit("s_add_u32 s25, s25, s24")
    A.emit(f"s_add_u32 s25, s25, {WS['H1']}")
    C0 = 0x3f4c422a
    C1 = 0x3d372713
    A.emit(f"s_mov_b32 s31, {C1:#x}")
    A.emit("s_mov_b32 s32, 0xc038aa3b")
    A.emit(f"s_mov_b32 s33, {C0:#x}")
    for rt in range(8):
        for j in range(0, 8, 2):
            x0 = ACC + rt*8 + j; x1 = x0 + 1
            round_bf16_2(A, x0, x1, 24)
            A.emit(f"v_add_f32 v{x0}, v{x0}, v{16+j}"); A.emit(f"v_add_f32 v{x1}, v{x1}, v{17+j}")
            round_bf16_2(A, x0, x1, 24)
            for x in (x0, x1):
                A.emit(f"v_mul_f32 v24, v{x}, v{x}")
                A.emit(f"v_mul_f32 v24, v24, v{x}")
                A.emit(f"v_fma_f32 v24, v24, s31, v{x}")
                A.emit("v_mul_f32 v24, s33, v24")
                A.emit("v_mul_f32 v24, s32, v24")
                A.emit("v_exp_f32 v24, v24")
                A.emit("s_nop 0")
                A.emit("v_add_f32 v24, 1.0, v24")
                A.emit("v_rcp_f32 v24, v24")
                A.emit("s_nop 0")
                A.emit(f"v_mul_f32 v{x}, v{x}, v24")
            A.emit(f"v_cvt_pk_bf16_f32 v{32 + 4*(rt&3) + j//2}, v{x0}, v{x1}")
        A.emit(f"buffer_store_dwordx4 {v(32+4*(rt&3),4)}, v10, s[12:15], s25 offen")
        A.emit(f"s_add_u32 s25, s25, {16*3584}")
    A.label("mlp1_end")
    A.emit("s_endpgm")
    return name, kernel_desc(name, 192), "grid=(224,1,1) block=(256,1,1) lds=131072"
```

```python
import sys
from common import *
import k_prep, k_qkv, k_rec, k_tail

HEADER = open("adaLN_cond__memory_aug_recurrent_mem_tr__mixer_channel_mlp__prompt.s.ref").read().split("; Override launch")[0]

def build(gens, path):
    A = Asm()
    A(".amdgcn_target \"amdgcn-amd-amdhsa--gfx950\"")
    A(".text")
    descs = []; launches = []
    for g in gens:
        name, desc, launch = g(A)
        descs.append(desc); launches.append(f"; @launch kernel={name} {launch}")
    out = HEADER + "\n".join(launches) + "\n" + A.text() + ".section .rodata,\"a\"\n"
    for d in descs:
        out += ".p2align 6\n" + d
    open(path, "w").write(out)

if __name__ == "__main__":
    if "stamp" in sys.argv: k_rec.STAMP = True
    if "xcd" in sys.argv: k_rec.XCDHACK = True
    gens = [k_prep.gen_prep, k_prep.gen_ln1, k_qkv.gen_qkv, k_rec.gen_rec, k_tail.gen_attn, k_tail.gen_oproj, k_tail.gen_mlp1, k_tail.gen_mlp2]
    build(gens, "adaLN_cond__memory_aug_recurrent_mem_tr__mixer_channel_mlp__prompt.s")
```

```python
from common import *
from k_rec import (SCALE, SPIN, LDS_SC, LDS_OF, LDS_MB, LDS_TOTAL, sentinel_check, interleave, L, softmax6_list)

NWG = 256
NHELP = NWG - 32
RD = 8
STAMP = False
SYNC = WS["SYNC"]

def stamp(A, i):
    if STAMP:
        A.emit(f"s_memtime s[{60+2*i}:{61+2*i}]")

def gen_role(A):
    A.emit("s_cmp_lg_u32 s3, 0")
    A.emit("s_cbranch_scc1 m_role_wait")
    A.emit("v_cmp_eq_u32 vcc, 0, v2")
    A.emit("s_and_saveexec_b64 s[42:43], vcc")
    A.emit("v_mov_b32 v10, 1")
    A.emit("s_lshl_b32 s20, s10, 2")
    A.emit("v_mov_b32 v11, s20")
    A.emit("buffer_atomic_add v10, v11, s[16:19], 0 offen sc0 sc1")
    A.emit("s_waitcnt vmcnt(0)")
    A.emit("v_mov_b32 v12, 1")
    A.emit("v_mov_b32 v11, 64")
    A.emit("buffer_atomic_add v12, v11, s[16:19], 0 offen sc0 sc1")
    A.emit("s_waitcnt vmcnt(0)")
    A.emit("s_nop 0")
    A.emit("v_readfirstlane_b32 s21, v10")
    A.emit("v_readfirstlane_b32 s22, v12")
    A.emit("v_mov_b32 v11, 68")
    A.emit("s_cmp_lg_u32 s21, 31")
    A.emit("s_cbranch_scc1 m_role_a")
    A.emit("s_add_u32 s20, s10, 1")
    A.emit("v_mov_b32 v14, s20")
    A.emit("v_mov_b32 v15, 0")
    A.emit("buffer_atomic_cmpswap v[14:15], v11, s[16:19], 0 offen sc1")
    A.emit("s_waitcnt vmcnt(0)")
    A.label("m_role_a")
    A.emit(f"s_cmp_lg_u32 s22, {NWG-1}")
    A.emit("s_cbranch_scc1 m_role_b")
    A.emit("v_mov_b32 v14, 100")
    A.emit("v_mov_b32 v15, 0")
    A.emit("buffer_atomic_cmpswap v[14:15], v11, s[16:19], 0 offen sc1")
    A.emit("s_waitcnt vmcnt(0)")
    A.label("m_role_b")
    A.emit("s_mov_b32 s30, 0")
    A.label("m_role_poll")
    A.emit("buffer_load_dword v14, v11, s[16:19], 0 offen sc1")
    A.emit("s_waitcnt vmcnt(0)")
    A.emit("s_nop 0")
    A.emit("v_readfirstlane_b32 s23, v14")
    A.emit("s_cmp_lg_u32 s23, 0")
    A.emit("s_cbranch_scc1 m_role_c")
    A.emit("s_add_u32 s30, s30, 1")
    A.emit(f"s_cmp_lt_u32 s30, {SPIN}")
    A.emit("s_cbranch_scc1 m_role_poll")
    A.label("m_role_c")
    A.emit("s_mov_b32 s24, 999")
    A.emit("s_add_u32 s20, s10, 1")
    A.emit("s_cmp_eq_u32 s23, s20")
    A.emit("s_cselect_b32 s24, s21, s24")
    A.emit("s_cmp_eq_u32 s23, 100")
    A.emit("s_cselect_b32 s24, s22, s24")
    A.emit("s_cselect_b32 s25, 1, 0")
    A.emit("s_mov_b32 s26, 0")
    A.emit("s_cmp_lt_u32 s24, 32")
    A.emit("s_cbranch_scc1 m_role_d")
    A.emit("s_mov_b32 s24, 999")
    A.emit("v_mov_b32 v12, 1")
    A.emit("v_mov_b32 v11, 72")
    A.emit("buffer_atomic_add v12, v11, s[16:19], 0 offen sc0 sc1")
    A.emit("s_waitcnt vmcnt(0)")
    A.emit("s_nop 0")
    A.emit("v_readfirstlane_b32 s26, v12")
    A.label("m_role_d")
    A.emit("s_lshl_b32 s20, s25, 10")
    A.emit("s_or_b32 s20, s20, s24")
    A.emit("s_lshl_b32 s26, s26, 12")
    A.emit("s_or_b32 s20, s20, s26")
    A.emit("v_mov_b32 v14, s20")
    A.emit("v_mov_b32 v15, 0")
    A.emit("ds_write_b32 v15, v14")
    A.emit("s_mov_b64 exec, s[42:43]")
    A.emit("s_waitcnt lgkmcnt(0)")
    A.label("m_role_wait")
    A.emit("s_barrier")
    A.emit("v_mov_b32 v15, 0")
    A.emit("ds_read_b32 v14, v15")
    A.emit("s_waitcnt lgkmcnt(0)")
    A.emit("s_nop 0")
    A.emit("v_readfirstlane_b32 s20, v14")
    A.emit("s_and_b32 s6, s20, 0x3ff")
    A.emit("s_bfe_u32 s11, s20, 0x1000a")
    A.emit("s_lshr_b32 s9, s20, 12")
    A.emit("s_barrier")

def gen_worker(A):
    LDS_TOUCH = LDS_TOTAL
    A.emit("v_and_b32 v3, 15, v2")
    A.emit("v_lshrrev_b32 v4, 4, v2")
    A.emit("v_and_b32 v5, 7, v2")
    A.emit("v_lshlrev_b32 v5, 5, v5")
    A.emit("v_and_b32 v1, 1, v4")
    A.emit("v_lshl_add_u32 v5, v1, 4, v5")
    A.emit("v_lshrrev_b32 v1, 1, v4")
    A.emit("v_lshl_add_u32 v5, v1, 8, v5")
    A.emit(f"v_add_u32 v5, {LDS_MB}, v5")
    A.emit("v_lshlrev_b32 v6, 4, v2")
    A.emit("v_lshlrev_b32 v7, 13, v3")
    A.emit("v_lshl_add_u32 v7, v4, 4, v7")
    A.emit("v_lshlrev_b32 v8, 6, v3")
    A.emit("v_lshl_add_u32 v8, v4, 4, v8")
    A.emit("v_bfe_u32 v9, v3, 1, 2")
    A.emit("v_lshlrev_b32 v9, 12, v9")
    A.emit("v_and_b32 v1, 1, v3")
    A.emit("v_lshl_add_u32 v9, v1, 6, v9")
    A.emit("v_lshl_add_u32 v9, v4, 4, v9")
    A.emit("v_lshrrev_b32 v1, 3, v3")
    A.emit("v_lshl_add_u32 v9, v1, 14, v9")
    A.emit("v_mov_b32 v1, 0x40000000")
    A.emit("s_mov_b32 s38, 0xfffffffc")
    A.emit("v_lshlrev_b32 v10, 3, v2")
    A.emit("v_cmp_gt_u32 vcc, 8, v2")
    A.emit("s_nop 1")
    A.emit("v_cndmask_b32 v10, v1, v10, vcc")
    A.emit("s_mov_b32 s40, 0")
    A.emit("s_mov_b32 s41, 0x00ff00ff")
    A.emit(f"s_mov_b32 s34, {SCALE:#x}"); A.emit(f"s_mov_b32 s35, {SCALE:#x}")
    A.emit(f"s_mov_b32 s36, {LOG2E:#x}"); A.emit(f"s_mov_b32 s37, {LOG2E:#x}")
    for tau in range(6):
        mat, odd = tau >> 1, tau & 1
        A.emit("s_lshl_b32 s20, s6, 3")
        A.emit("s_lshl_b32 s21, s3, 1")
        A.emit("s_add_u32 s20, s20, s21")
        A.emit(f"s_add_u32 s20, s20, {mat*256 + odd}")
        A.emit("s_lshl_b32 s20, s20, 14")
        A.emit(f"s_add_u32 s20, s20, {WS['WQKV']}")
        for t in range(16):
            dst = a(64*tau + 4*t, 4) if tau < 4 else v(128 + 64*(tau-4) + 4*t, 4)
            A.emit(f"buffer_load_dwordx4 {dst}, v6, s[12:15], s20 offen offset:{(t&3)*1024}")
            if t & 3 == 3:
                A.emit("s_add_u32 s20, s20, 4096")
    A.emit("s_lshl_b32 s20, s6, 17")
    A.emit("s_lshl_b32 s21, s3, 15")
    A.emit("s_add_u32 s20, s20, s21")
    A.emit(f"s_add_u32 s20, s20, {WS['WO']}")
    A.emit("v_add_u32 v11, s21, v6")
    for half in range(2):
        for i in range(16):
            A.emit(f"buffer_load_dwordx4 v[{64+4*i}:{67+4*i}], v6, s[12:15], s20 offen offset:{(i&3)*1024}")
            if i & 3 == 3:
                A.emit("s_add_u32 s20, s20, 4096")
        for i in range(16):
            A.emit(f"s_waitcnt vmcnt({15-i})")
            A.emit(f"ds_write_b128 v11, v[{64+4*i}:{67+4*i}] offset:{half*16384 + i*1024}")
    A.emit("s_mov_b32 s7, 0")
    A.emit("s_mov_b32 s46, 0")
    A.emit(f"s_mov_b32 s22, {WS['MEM']}")
    A.emit("s_lshl_b32 s23, s6, 8"); A.emit("s_lshl_b32 s20, s3, 6"); A.emit("s_add_u32 s23, s23, s20"); A.emit(f"s_add_u32 s23, s23, {WS['K']}")
    A.emit("s_lshl_b32 s24, s6, 13"); A.emit("s_lshl_b32 s20, s3, 11"); A.emit("s_add_u32 s24, s24, s20"); A.emit(f"s_add_u32 s24, s24, {WS['VT']}")
    A.emit("s_lshl_b32 s25, s6, 12"); A.emit("s_lshl_b32 s20, s3, 10"); A.emit("s_add_u32 s25, s25, s20"); A.emit(f"s_add_u32 s25, s25, {WS['KMEM']}")
    A.emit("s_lshl_b32 s26, s6, 12"); A.emit("s_lshl_b32 s20, s3, 10"); A.emit("s_add_u32 s26, s26, s20"); A.emit(f"s_add_u32 s26, s26, {WS['VMEM']}")
    A.emit("s_lshl_b32 s27, s3, 17"); A.emit("s_lshl_b32 s20, s6, 7"); A.emit("s_add_u32 s27, s27, s20"); A.emit(f"s_add_u32 s27, s27, {WS['PART']}")
    A.emit("s_lshl_b32 s28, s6, 14"); A.emit("s_lshl_b32 s20, s3, 12"); A.emit("s_add_u32 s28, s28, s20"); A.emit(f"s_add_u32 s28, s28, {WS['PART']}")
    A.emit("s_lshl_b32 s29, s6, 8"); A.emit("s_lshl_b32 s20, s3, 6"); A.emit("s_add_u32 s29, s29, s20"); A.emit("s_add_u32 s29, s29, 8192")
    A.emit("s_lshl_b32 s31, s3, 11")
    A.emit("s_lshl_b32 s32, s6, 4"); A.emit("s_lshl_b32 s20, s3, 2"); A.emit("s_add_u32 s32, s32, s20"); A.emit(f"s_add_u32 s32, s32, {SYNC}")
    A.emit("v_lshlrev_b32 v12, 13, v2")
    A.emit("v_add_u32 v12, s23, v12")
    A.emit("v_lshlrev_b32 v13, 7, v3")
    A.emit("v_add_u32 v13, s24, v13")
    A.emit("v_cmp_gt_u32 vcc, 32, v2")
    A.emit("s_lshl_b32 s21, s3, 13")
    A.emit("v_add_u32 v11, s21, v6")
    A.emit("v_add_u32 v0, 0x10000, v11")
    A.emit("v_lshrrev_b32 v14, 3, v3")
    A.emit("v_cndmask_b32 v3, v13, v12, vcc")
    A.emit(f"v_add_u32 v1, {LDS_SC}, v6")
    A.emit("s_mul_i32 s20, s3, 3072")
    A.emit("v_add_u32 v2, s20, v1")
    A.emit("v_mul_u32_u24 v13, 1920, v14")
    A.emit("v_add_u32 v4, 1024, v1")
    A.emit("v_mul_u32_u24 v12, 120, v14")
    A.emit("v_sub_u32 v4, v4, v12")
    A.emit("v_add_u32 v1, v1, v13")
    A.emit("v_add_u32 v62, s31, v6")
    A.emit(f"v_add_u32 v62, {LDS_MB}, v62")
    A.emit("s_lshl_b32 s20, s3, 10")
    A.emit("v_add_u32 v60, s20, v6")
    A.emit(f"v_add_u32 v60, {LDS_OF}, v60")
    A.emit(f"v_add_u32 v61, {LDS_OF}, v6")
    A.emit("s_lshl_b32 s20, s3, 8")
    A.emit(f"s_add_u32 s20, s20, {LDS_TOUCH}")
    A.emit("s_mov_b32 m0, s20")
    def real_kv():
        A.emit("s_add_u32 s20, s23, 0x20000")
        A.emit("buffer_load_dwordx4 v[36:39], v7, s[12:15], s23 offen")
        A.emit("buffer_load_dwordx4 v[40:43], v7, s[12:15], s20 offen")
        A.emit("buffer_load_dwordx4 v[44:47], v8, s[12:15], s24 offen")
        A.emit("buffer_load_dwordx4 v[48:51], v8, s[12:15], s24 offen offset:1024")
    def handoff_stores(fn, tag):
        A.emit("s_cmp_lg_u32 s11, 0")
        A.emit(f"s_cbranch_scc1 {tag}_g")
        fn("")
        A.emit(f"s_branch {tag}_e")
        A.label(f"{tag}_g")
        fn(" sc1")
        A.label(f"{tag}_e")
    A.emit("s_mov_b32 s30, 0")
    A.emit(f"s_mov_b32 s33, {SYNC + 512}")
    A.label("w_kv0")
    A.emit("buffer_load_dword v52, off, s[12:15], s33 sc1")
    A.emit("s_waitcnt vmcnt(0)")
    A.emit("v_cmp_ne_u32 vcc, 16, v52")
    A.emit("s_cbranch_vccz w_kv0_ok")
    A.emit("s_sleep 8")
    A.emit("s_add_u32 s30, s30, 1")
    A.emit(f"s_cmp_lt_u32 s30, {SPIN}")
    A.emit("s_cbranch_scc1 w_kv0")
    A.label("w_kv0_ok")
    A.emit("s_waitcnt lgkmcnt(0)")
    A.emit("s_barrier")
    A.label("rec_step")
    stamp(A,0)
    A.emit("s_mov_b32 s30, 0")
    A.emit("s_add_u32 s21, s22, s31")
    A.emit("s_cmp_lg_u32 s46, 0")
    A.emit("s_cbranch_scc1 rec_poll")
    A.emit("s_add_u32 s33, s7, 1")
    A.emit("s_and_b32 s20, s33, 3")
    A.emit("s_cmp_lg_u32 s20, 0")
    A.emit("s_cbranch_scc1 rec_poll")
    A.emit("s_lshr_b32 s33, s33, 2")
    A.emit("s_min_u32 s33, s33, 15")
    A.emit(f"s_mov_b32 s47, {SYNC + 512}")
    A.emit("v_lshrrev_b32 v52, 2, v6")
    A.emit("v_and_b32 v52, 60, v52")
    A.label("rec_kvchk")
    A.emit("buffer_load_dword v53, v52, s[12:15], s47 offen sc1")
    A.emit("s_waitcnt vmcnt(0)")
    A.emit("v_cmp_ne_u32 vcc, 16, v53")
    A.emit("s_cmp_eq_u64 vcc, 0")
    A.emit("s_cselect_b32 s46, 1, 0")
    A.emit("s_lshr_b32 s20, vcc_lo, s33")
    A.emit("s_and_b32 s20, s20, 1")
    A.emit("s_cmp_eq_u32 s20, 0")
    A.emit("s_cbranch_scc1 rec_poll")
    A.emit("s_sleep 4")
    A.emit("s_add_u32 s30, s30, 1")
    A.emit(f"s_cmp_lt_u32 s30, {SPIN}")
    A.emit("s_cbranch_scc1 rec_kvchk")
    A.label("rec_poll")
    A.emit("buffer_load_dwordx4 v[64:67], v6, s[12:15], s21 offen sc1")
    A.emit("buffer_load_dwordx4 v[68:71], v6, s[12:15], s21 offen offset:1024 sc1")
    A.emit("s_waitcnt vmcnt(0)")
    sentinel_check(A, 64, 8, 52, "rec_poll", "rec_poll_ok", 30)
    A.label("rec_poll_ok")
    A.emit("ds_write_b128 v62, v[64:67]")
    A.emit("ds_write_b128 v62, v[68:71] offset:1024")
    A.emit("s_waitcnt lgkmcnt(0)")
    A.emit("s_barrier")
    stamp(A,1)
    for t in range(16):
        A.emit(f"ds_read_b128 v[{64+4*t}:{67+4*t}], v5 offset:{512*t}")
    A.emit("s_sub_u32 s47, s26, 0x20000")
    A.emit("s_cmp_eq_u32 s7, 0")
    A.emit("s_cselect_b32 s47, s26, s47")
    A.emit("s_sub_u32 s20, s7, 1")
    A.emit("s_max_i32 s20, s20, 0")
    A.emit("v_mov_b32 v52, s20")
    A.emit("s_bfe_u32 s20, s7, 0x10001")
    A.emit("s_lshl_b32 s39, 1, s20")
    A.emit("v_mov_b32 v63, s39")
    A.emit("s_xor_b32 s39, s39, 3")
    A.emit("s_add_u32 s33, s7, 1")
    A.emit("s_min_u32 s33, s33, 63")
    A.emit("s_lshl_b32 s33, s33, 18")
    A.emit("s_add_u32 s20, s23, 0x20000")
    pre = ["buffer_load_dwordx4 v[36:39], v7, s[12:15], s23 offen",
           "buffer_load_dwordx4 v[40:43], v7, s[12:15], s20 offen",
           "buffer_load_dwordx4 v[44:47], v8, s[12:15], s24 offen",
           "buffer_load_dwordx4 v[48:51], v8, s[12:15], s24 offen offset:1024",
           "buffer_load_dword v3, s[12:15], s33 offen lds",
           "buffer_store_dwordx4 v[28:31], v6, s[12:15], s47 offen sc1",
           "buffer_store_dword v52, off, s[12:15], s32 sc1"]
    for t in range(16):
        A.emit(f"s_waitcnt lgkmcnt({15-t})")
        for tau in range(4):
            d = 12 + 4*tau
            c = "0" if t == 0 else v(d, 4)
            A.emit(f"v_mfma_f32_16x16x32_bf16 {v(d,4)}, {a(64*tau+4*t,4)}, {v(64+4*t,4)}, {c}")
        if t < 7:
            A.emit(pre[t])
    def vm(t):
        out = []
        for tp in range(2):
            d = 28 + 4*tp
            c = "0" if t == 0 else v(d, 4)
            out.append(f"v_mfma_f32_16x16x32_bf16 {v(d,4)}, {v(64+4*t,4)}, {v(128+64*tp+4*t,4)}, {c}")
        return out
    vlist = [m for t in range(16) for m in vm(t)]
    for m in vlist[0:2]: A.emit(m)
    A.emit("s_nop 5")
    for i in range(4):
        A.emit(f"v_cvt_pk_bf16_f32 v{52+i}, v{12+2*i}, v{13+2*i}")
    for i in range(4):
        A.emit(f"v_cvt_pk_bf16_f32 v{56+i}, v{20+2*i}, v{21+2*i}")
    A.emit("s_waitcnt vmcnt(5)")
    A.emit("buffer_store_dwordx4 v[56:59], v6, s[12:15], s25 offen sc1")
    A.emit("v_mfma_f32_16x16x32_bf16 v[12:15], v[56:59], v[52:55], 0")
    A.emit("v_mfma_f32_16x16x32_bf16 v[16:19], v[36:39], v[52:55], 0")
    A.emit("v_mfma_f32_16x16x32_bf16 v[20:23], v[40:43], v[52:55], 0")
    for m in vlist[2:4]: A.emit(m)
    A.emit("s_nop 5")
    for c in range(3):
        A.emit(f"ds_write_b128 v2, v[{12+4*c}:{15+4*c}] offset:{1024*c}")
    stamp(A,2)
    A.emit("s_waitcnt lgkmcnt(0)")
    A.emit("s_barrier")
    stamp(A,3)
    XR = [12, 18, 36, 52]
    for w in range(4):
        A.emit(f"ds_read_b128 {v(XR[w],4)}, v1 offset:{3072*w}")
        A.emit(f"ds_read_b64 {v(XR[w]+4,2)}, v4 offset:{3072*w}")
    for m in vlist[4:8]: A.emit(m)
    for w in range(1, 4):
        A.emit(f"s_waitcnt lgkmcnt({6-2*w})")
        for i in range(0, 6, 2):
            A.emit(f"v_pk_add_f32 {v(12+i,2)}, {v(12+i,2)}, {v(XR[w]+i,2)}")
    sm = softmax6_list(12, 24, 40, 34)
    interleave(A, sm, vlist[8:], 3)
    A.emit("v_cvt_pk_bf16_f32 v40, v12, v13"); A.emit("v_cvt_pk_bf16_f32 v41, v14, v15")
    A.emit("v_cvt_pk_bf16_f32 v36, v16, v17")
    A.emit("v_mov_b32 v42, 0"); A.emit("v_mov_b32 v43, 0")
    A.emit("v_mov_b32_dpp v37, v36 row_ror:8 row_mask:0xf bank_mask:0xf")
    A.emit("v_mov_b32_dpp v38, v40 row_ror:8 row_mask:0xf bank_mask:0xf")
    A.emit("v_mov_b32_dpp v39, v41 row_ror:8 row_mask:0xf bank_mask:0xf")
    A.emit("v_cvt_pk_bf16_f32 v52, v28, v29"); A.emit("v_cvt_pk_bf16_f32 v53, v30, v31")
    A.emit("v_mov_b32 v54, 0"); A.emit("v_mov_b32 v55, 0")
    A.emit("v_cvt_pk_bf16_f32 v56, v32, v33"); A.emit("v_cvt_pk_bf16_f32 v57, v34, v35")
    A.emit("v_mov_b32 v58, 0"); A.emit("v_mov_b32 v59, 0")
    A.emit("s_waitcnt vmcnt(4)")
    A.emit("v_mfma_f32_16x16x32_bf16 v[12:15], v[44:47], v[36:39], 0")
    A.emit("v_mfma_f32_16x16x32_bf16 v[16:19], v[48:51], v[36:39], 0")
    A.emit("v_mfma_f32_16x16x32_bf16 v[12:15], v[52:55], v[40:43], v[12:15]")
    A.emit("v_mfma_f32_16x16x32_bf16 v[16:19], v[56:59], v[40:43], v[16:19]")
    A.emit("v_mov_b32 v28, v52"); A.emit("v_mov_b32 v29, v53"); A.emit("v_mov_b32 v30, v56"); A.emit("v_mov_b32 v31, v57")
    A.emit("s_cmp_eq_u32 s7, 63")
    A.emit("s_cbranch_scc1 rec_last")
    def wo_read(c):
        for u in range(4):
            base = "v11" if u < 2 else "v0"
            st = 64 + 16*(c & 1) + 4*u
            A.emit(f"ds_read_b128 v[{st}:{st+3}], {base} offset:{(u&1)*32768 + c*1024}")
    wo_read(0); wo_read(1)
    A.emit("s_add_u32 s23, s23, 0x40000")
    A.emit("s_add_u32 s24, s24, 0x40000")
    A.emit("s_add_u32 s25, s25, 0x20000")
    A.emit("s_add_u32 s26, s26, 0x20000")
    for i in range(4):
        A.emit(f"v_cvt_pk_bf16_f32 v{20+i}, v{12+2*i}, v{13+2*i}")
    A.emit("ds_write_b128 v60, v[20:23]")
    stamp(A,4)
    A.emit("s_waitcnt lgkmcnt(0)")
    A.emit("s_barrier")
    stamp(A,5)
    for u in range(4):
        A.emit(f"ds_read_b128 v[{12+4*u}:{15+4*u}], v61 offset:{1024*u}")
    A.emit("s_mov_b32 s20, s27")
    A.emit("s_waitcnt lgkmcnt(0)")
    def outproj(fl):
        def fin(p):
            d0, d1 = 96 + 8*p, 100 + 8*p
            for r in range(4):
                A.emit(f"v_mov_b32_dpp v{d0+r}, v{d1+r} row_shr:8 row_mask:0xf bank_mask:0xc")
            for r in range(4):
                A.emit(f"v_and_or_b32 v{d0+r}, v{d0+r}, s38, v63")
            A.emit(f"buffer_store_dwordx4 {v(d0,4)}, v9, s[12:15], s20 offen{fl}")
            A.emit("s_add_u32 s20, s20, 32768")
        for c in range(8):
            if c >= 2:
                A.emit("s_waitcnt lgkmcnt(4)" if c < 7 else "s_waitcnt lgkmcnt(0)")
            d = 96 + 4*c
            for u in range(4):
                st = 64 + 16*(c & 1) + 4*u
                cc = "0" if u == 0 else v(d, 4)
                A.emit(f"v_mfma_f32_16x16x32_bf16 {v(d,4)}, {v(st,4)}, {v(12+4*u,4)}, {cc}")
            if c + 2 < 8:
                wo_read(c + 2)
            if c in (3, 5, 7):
                fin((c - 3) // 2)
        A.emit("s_nop 7")
        fin(3)
    handoff_stores(outproj, "rec_op")
    stamp(A,6)
    A.emit("s_mov_b32 s30, 0")
    A.label("rec_rpoll")
    for it in range(4):
        A.emit(f"buffer_load_dwordx4 v[{64+4*it}:{67+4*it}], v6, s[12:15], s28 offen offset:{it*1024} sc1")
    A.emit("s_waitcnt vmcnt(0)")
    A.emit("v_or3_b32 v52, v64, v65, v66")
    for i in range(3, 15, 2):
        A.emit(f"v_or3_b32 v52, v52, v{64+i}, v{65+i}")
    A.emit("v_or_b32 v52, v52, v79")
    A.emit("v_and_b32 v52, s39, v52")
    A.emit("v_cmp_ne_u32 vcc, 0, v52")
    A.emit("s_cbranch_vccz rec_rpoll_ok")
    A.emit("s_add_u32 s30, s30, 1")
    A.emit(f"s_cmp_lt_u32 s30, {SPIN}")
    A.emit("s_cbranch_scc1 rec_rpoll")
    A.label("rec_rpoll_ok")
    stamp(A,7)
    for r in range(4):
        A.emit(f"v_add_f32 v{12+r}, v{64+r}, v{68+r}")
    for it in range(2, 4):
        for r in range(4):
            A.emit(f"v_add_f32 v{12+r}, v{12+r}, v{64+4*it+r}")
    A.emit("s_nop 0")
    for r in range(4):
        A.emit(f"v_add_f32_dpp v{12+r}, v{12+r}, v{12+r} row_ror:8 row_mask:0xf bank_mask:0xf")
    for sw in ("v_permlane16_swap_b32", "v_permlane32_swap_b32"):
        for r in range(4):
            A.emit(f"v_mov_b32 v{16+r}, v{12+r}")
        A.emit("s_nop 0")
        for r in range(4):
            A.emit(f"{sw} v{12+r}, v{16+r}")
        A.emit("s_nop 0")
        for r in range(4):
            A.emit(f"v_add_f32 v{12+r}, v{12+r}, v{16+r}")
    A.emit("v_cvt_pk_bf16_f32 v16, v12, v13")
    A.emit("v_cvt_pk_bf16_f32 v17, v14, v15")
    A.emit("s_add_u32 s20, s22, s29")
    handoff_stores(lambda fl: A.emit(f"buffer_store_dwordx2 v[16:17], v10, s[12:15], s20 offen{fl}"), "rec_pub")
    A.emit("s_add_u32 s7, s7, 1")
    stamp(A,8)
    if STAMP:
        A.emit("s_cmp_lg_u32 s7, 11")
        A.emit("s_cbranch_scc1 rec_next")
        A.emit("s_cmp_lg_u32 s6, 0")
        A.emit("s_cbranch_scc1 rec_next")
        A.emit("s_cmp_lg_u32 s3, 0")
        A.emit("s_cbranch_scc1 rec_next")
        for i in range(9):
            A.emit(f"v_mov_b32 v12, s{60+2*i}")
            A.emit(f"v_mov_b32 v13, {128+4*i}")
            A.emit("buffer_store_dword v12, v13, s[16:19], 0 offen")
    A.label("rec_next")
    A.emit("s_add_u32 s22, s22, 8192")
    A.emit("s_xor_b32 s27, s27, 0x80000")
    A.emit("s_xor_b32 s28, s28, 0x80000")
    A.emit("s_branch rec_step")
    A.label("rec_last")
    A.emit("buffer_store_dwordx4 v[28:31], v6, s[12:15], s26 offen sc1")
    A.emit("s_waitcnt vmcnt(0)")
    A.emit("v_mov_b32 v18, 64")
    A.emit("buffer_store_dword v18, off, s[12:15], s32 sc1")
    A.emit("s_branch main_end")


def gen_helper_qkv(A):
    A.emit("v_and_b32 v3, 15, v2")
    A.emit("v_lshrrev_b32 v4, 4, v2")
    A.emit("v_lshlrev_b32 v5, 10, v3")
    A.emit("v_lshl_add_u32 v5, v4, 4, v5")
    A.emit("v_lshlrev_b32 v6, 4, v2")
    A.emit("s_lshl_b32 s25, s3, 15")
    A.emit("v_add_u32 v7, s25, v6")
    A.emit("v_add_u32 v9, 0x10000, v6")
    A.emit("s_mov_b32 s8, s9")
    A.label("h_task")
    A.emit("s_cmp_lt_u32 s8, 256")
    A.emit("s_cbranch_scc0 h_task_q")
    A.emit("s_lshr_b32 s6, s8, 4")
    A.emit("s_and_b32 s26, s8, 15")
    A.emit("s_lshl_b32 s26, s26, 3")
    A.emit("s_add_u32 s26, s26, 64")
    A.emit(f"s_mov_b32 s36, {SYNC + 512}")
    A.emit("s_branch h_task_d")
    A.label("h_task_q")
    A.emit("s_sub_u32 s26, s8, 256")
    A.emit("s_lshr_b32 s6, s26, 3")
    A.emit("s_and_b32 s26, s26, 7")
    A.emit("s_lshl_b32 s26, s26, 3")
    A.emit(f"s_mov_b32 s36, {SYNC + 576}")
    A.label("h_task_d")
    A.emit("s_lshl_b32 s20, s6, 2")
    A.emit("s_add_u32 s36, s36, s20")
    A.emit("s_lshl_b32 s20, s3, 1")
    A.emit("s_add_u32 s26, s26, s20")
    A.emit("s_mov_b32 s27, 0")
    A.emit("s_lshl_b32 s28, s26, 16")
    A.emit(f"s_add_u32 s28, s28, {WS['WQKV']}")
    for c in range(1, 4):
        A.emit(f"s_add_u32 s{28+c}, s28, {16384*c}")
    A.emit("s_lshl_b32 s24, s6, 17")
    A.emit("s_add_u32 s24, s24, s25")
    A.emit(f"s_add_u32 s24, s24, {WS['H']}")
    for half in range(2):
        for t in range(16):
            A.emit(f"buffer_load_dwordx4 {v(64+64*half+4*t,4)}, v5, s[12:15], s24 offen offset:{64*t}")
        A.emit("s_add_u32 s24, s24, 16384")
    A.emit("v_mov_b32 v8, v6")
    def bload(stage):
        for c in range(4):
            A.emit(f"buffer_load_dwordx4 {a(16*stage+4*c,4)}, v8, s[12:15], s{28+c} offen")
    for st in range(RD - 1):
        bload(st)
        A.emit("v_add_u32 v8, 1024, v8")
    nb = 4 * (RD - 1)
    for i in range(32):
        A.emit(f"s_waitcnt vmcnt({31 - i + nb})")
        A.emit(f"ds_write_b128 v7, {v(64+4*i,4)} offset:{(i>>4)*16384 + (i&15)*1024}")
    ACC, AB = 128, 64
    A.emit("s_waitcnt lgkmcnt(0)")
    A.emit("s_barrier")
    A.label("qkv_group")
    for rt in range(8):
        base = "v6" if rt < 4 else "v9"
        A.emit(f"ds_read_b128 {v(AB+4*rt,4)}, {base} offset:{(rt&3)*16384}")
    A.emit("s_cmp_ge_u32 s26, 128")
    A.emit("s_cbranch_scc1 qkv_vbody")
    for isv in (0, 1):
        if isv: A.label("qkv_vbody")
        for t in range(16):
            cb, nbuf = t & 1, (t + 1) & 1
            tp = t + RD - 1
            if tp == 16:
                A.emit("v_mov_b32 v8, v6")
                A.emit("s_cmp_lt_u32 s27, 1")
                A.emit("s_cselect_b32 s33, 0x10000, 0")
                for c in range(4):
                    A.emit(f"s_add_u32 s{28+c}, s{28+c}, s33")
            bload(tp % RD)
            A.emit("v_add_u32 v8, 1024, v8")
            if t < 15:
                for rt in range(8):
                    base = "v6" if rt < 4 else "v9"
                    A.emit(f"ds_read_b128 {v(AB+32*nbuf+4*rt,4)}, {base} offset:{(rt&3)*16384 + (t+1)*1024}")
                A.emit(f"s_waitcnt vmcnt({4*(RD-1)}) lgkmcnt(8)")
            else:
                A.emit(f"s_waitcnt vmcnt({4*(RD-1)}) lgkmcnt(0)")
            for rt in range(8):
                for c in range(4):
                    d = ACC + (rt * 4 + c) * 4
                    af = v(AB+32*cb+4*rt, 4)
                    bf = a(16*(t % RD) + 4*c, 4)
                    src2 = "0" if t == 0 else v(d, 4)
                    if isv:
                        A.emit(f"v_mfma_f32_16x16x32_bf16 {v(d,4)}, {af}, {bf}, {src2}")
                    else:
                        A.emit(f"v_mfma_f32_16x16x32_bf16 {v(d,4)}, {bf}, {af}, {src2}")
        A.emit("s_nop 7")
        A.emit("s_nop 1")
        if not isv:
            A.emit("s_lshr_b32 s34, s26, 6")
            A.emit("s_lshl_b32 s34, s34, 24")
            A.emit("s_and_b32 s35, s26, 63")
            A.emit("s_lshl_b32 s35, s35, 7")
            A.emit("s_add_u32 s34, s34, s35")
            A.emit("s_lshl_b32 s35, s6, 20")
            A.emit("s_add_u32 s34, s34, s35")
            A.emit(f"s_add_u32 s34, s34, {WS['Q']}")
            A.emit("v_lshlrev_b32 v10, 13, v3")
            A.emit("v_lshl_add_u32 v10, v4, 4, v10")
            for rt in range(8):
                for p in range(2):
                    d0 = ACC + (rt * 4 + 2 * p) * 4
                    o = 12 + 4 * ((rt * 2 + p) & 3)
                    for i in range(4):
                        A.emit(f"v_cvt_pk_bf16_f32 v{o+i}, v{d0+2*i}, v{d0+2*i+1}")
                    A.emit(f"buffer_store_dwordx4 v[{o}:{o+3}], v10, s[12:15], s34 offen offset:{64*p} sc1")
                A.emit("s_add_u32 s34, s34, 0x20000")
            A.emit("s_branch qkv_next")
        else:
            A.emit("s_sub_u32 s34, s26, 128")
            A.emit("s_lshl_b32 s34, s34, 12")
            A.emit("s_lshl_b32 s35, s6, 20")
            A.emit("s_add_u32 s34, s34, s35")
            A.emit(f"s_add_u32 s34, s34, {WS['VT']}")
            A.emit("v_lshlrev_b32 v10, 6, v3")
            A.emit("v_lshl_add_u32 v10, v4, 4, v10")
            for sig in range(4):
                for c in range(4):
                    d0 = ACC + ((2 * sig) * 4 + c) * 4
                    d1 = ACC + ((2 * sig + 1) * 4 + c) * 4
                    o = 12 + 4 * (c & 3)
                    A.emit(f"v_cvt_pk_bf16_f32 v{o}, v{d0}, v{d0+1}")
                    A.emit(f"v_cvt_pk_bf16_f32 v{o+1}, v{d0+2}, v{d0+3}")
                    A.emit(f"v_cvt_pk_bf16_f32 v{o+2}, v{d1}, v{d1+1}")
                    A.emit(f"v_cvt_pk_bf16_f32 v{o+3}, v{d1+2}, v{d1+3}")
                    A.emit(f"buffer_store_dwordx4 v[{o}:{o+3}], v10, s[12:15], s34 offen offset:{1024*c} sc1")
                A.emit("s_add_u32 s34, s34, 0x40000")
    A.label("qkv_next")
    A.emit("s_add_u32 s26, s26, 1")
    A.emit("s_add_u32 s27, s27, 1")
    A.emit("s_cmp_lt_u32 s27, 2")
    A.emit("s_cbranch_scc1 qkv_group")
    A.emit("s_waitcnt vmcnt(0)")
    A.emit("s_barrier")
    A.emit("s_cmp_lg_u32 s3, 0")
    A.emit("s_cbranch_scc1 h_task_n")
    A.emit("v_cmp_eq_u32 vcc, 0, v2")
    A.emit("s_and_saveexec_b64 s[42:43], vcc")
    A.emit("v_mov_b32 v12, 1")
    A.emit("buffer_atomic_add v12, off, s[12:15], s36 sc1")
    A.emit("s_mov_b64 exec, s[42:43]")
    A.label("h_task_n")
    A.emit(f"s_add_u32 s8, s8, {NHELP}")
    A.emit("s_cmp_lt_u32 s8, 384")
    A.emit("s_cbranch_scc1 h_task")


def gen_helper_attn(A):
    A.emit("v_lshlrev_b32 v7, 13, v3")
    A.emit("v_lshl_add_u32 v7, v4, 4, v7")
    A.emit("v_lshlrev_b32 v8, 6, v3")
    A.emit("v_lshl_add_u32 v8, v4, 4, v8")
    A.emit("s_mov_b32 s40, 0")
    A.emit("s_mov_b32 s41, -1")
    A.emit("v_lshlrev_b32 v9, 2, v4")
    for r in range(4):
        A.emit(f"v_add_u32 v10, {r}, v9")
        A.emit(f"v_cmp_gt_u32 s[{44+2*r}:{45+2*r}], v10, v3")
    A.emit("s_lshl_b32 s6, s9, 2")
    A.emit("s_add_u32 s6, s6, s3")
    A.label("a_unit")
    A.emit("s_lshr_b32 s7, s6, 5")
    A.emit("s_and_b32 s8, s6, 31")
    A.emit("s_lshl_b32 s20, s8, 4")
    A.emit("s_lshr_b32 s21, s7, 2")
    A.emit("s_lshl_b32 s21, s21, 2")
    A.emit("s_add_u32 s22, s21, 512")
    A.emit("s_add_u32 s23, s21, 576")
    A.emit("s_add_u32 s24, s7, 1")
    A.emit("v_and_b32 v11, 3, v2")
    A.emit("v_lshl_add_u32 v11, v11, 2, s20")
    A.emit("v_mov_b32 v12, s24")
    A.emit("v_cmp_eq_u32 vcc, 4, v2")
    A.emit("v_mov_b32 v13, s22"); A.emit("v_mov_b32 v14, 16")
    A.emit("v_cndmask_b32 v11, v11, v13, vcc"); A.emit("v_cndmask_b32 v12, v12, v14, vcc")
    A.emit("v_cmp_eq_u32 vcc, 5, v2")
    A.emit("v_mov_b32 v13, s23"); A.emit("v_mov_b32 v14, 8")
    A.emit("v_cndmask_b32 v11, v11, v13, vcc"); A.emit("v_cndmask_b32 v12, v12, v14, vcc")
    A.emit(f"s_mov_b32 s25, {SYNC}")
    A.emit("s_mov_b32 s30, 0")
    A.label("a_wait")
    A.emit("buffer_load_dword v13, v11, s[12:15], s25 offen sc1")
    A.emit("s_waitcnt vmcnt(0)")
    A.emit("v_cmp_lt_u32 vcc, v13, v12")
    A.emit("s_cbranch_vccz a_go")
    A.emit("s_sleep 32")
    A.emit("s_add_u32 s30, s30, 1")
    A.emit(f"s_cmp_lt_u32 s30, {SPIN}")
    A.emit("s_cbranch_scc1 a_wait")
    A.label("a_go")
    A.emit("s_lshl_b32 s20, s7, 18")
    A.emit("s_lshl_b32 s21, s8, 8")
    A.emit("s_add_u32 s20, s20, s21")
    QF, KF, KM, VT, VM = 32, 64, 96, 112, 144
    A.emit(f"s_add_u32 s22, s20, {WS['Q']}")
    A.emit(f"s_add_u32 s23, s20, {WS['Q'] + 0x20000}")
    A.emit(f"s_add_u32 s24, s20, {WS['K']}")
    A.emit(f"s_add_u32 s25, s20, {WS['K'] + 0x20000}")
    for tl in range(2):
        for u in range(4):
            A.emit(f"buffer_load_dwordx4 {v(QF+16*tl+4*u,4)}, v7, s[12:15], s{22+tl} offen offset:{64*u}")
    for tl in range(2):
        for u in range(4):
            A.emit(f"buffer_load_dwordx4 {v(KF+16*tl+4*u,4)}, v7, s[12:15], s{24+tl} offen offset:{64*u}")
    A.emit("s_lshl_b32 s26, s6, 12")
    A.emit(f"s_add_u32 s30, s26, {WS['VMEM']}")
    A.emit(f"s_add_u32 s26, s26, {WS['KMEM']}")
    for u in range(4):
        A.emit(f"buffer_load_dwordx4 {v(KM+4*u,4)}, v6, s[12:15], s26 offen offset:{1024*u}")
    A.emit("s_lshl_b32 s27, s6, 13")
    A.emit(f"s_add_u32 s28, s27, {WS['VT']}")
    A.emit(f"s_add_u32 s29, s27, {WS['VT'] + 4096}")
    for T in range(8):
        A.emit(f"buffer_load_dwordx4 {v(VT+4*T,4)}, v8, s[12:15], s{28+(T>>2)} offen offset:{1024*(T&3)}")
    for w in range(4):
        A.emit(f"buffer_load_dwordx4 {v(216+4*w,4)}, v6, s[12:15], s30 offen offset:{1024*w}")
    A.emit("s_waitcnt vmcnt(12)")
    SB = 176
    for qt in range(2):
        for kt in range(3):
            if qt == 0 and kt == 2: continue
            d = SB + 12*qt + 4*kt
            for u in range(4):
                af = v(KM+4*u,4) if kt == 0 else v(KF+16*(kt-1)+4*u,4)
                c = "0" if u == 0 else v(d,4)
                A.emit(f"v_mfma_f32_16x16x32_bf16 {v(d,4)}, {af}, {v(QF+16*qt+4*u,4)}, {c}")
    A.emit("s_nop 7")
    PF = 200
    T0 = 12
    for qt in range(2):
        S = SB + 12*qt
        n = 8 if qt == 0 else 12
        for i in range(0, n, 2):
            round_bf16_2(A, S+i, S+i+1, T0)
        for i in range(n):
            A.emit(f"v_mul_f32 {v(S+i)}, {SCALE:#x}, {v(S+i)}")
        for i in range(0, n, 2):
            round_bf16_2(A, S+i, S+i+1, T0)
        A.emit(f"v_mov_b32 {v(T0)}, 0xff800000")
        for i in range(4):
            A.emit(f"v_cndmask_b32 {v(S+i)}, {v(S+i)}, {v(T0)}, s[40:41]")
        dg = S + 4 + 4*qt
        for r in range(4):
            A.emit(f"v_cndmask_b32 {v(dg+r)}, {v(dg+r)}, {v(T0)}, s[{44+2*r}:{45+2*r}]")
        A.emit(f"v_max3_f32 {v(T0)}, {v(S)}, {v(S+1)}, {v(S+2)}")
        i = 3
        while i < n:
            if i + 1 < n:
                A.emit(f"v_max3_f32 {v(T0)}, {v(T0)}, {v(S+i)}, {v(S+i+1)}"); i += 2
            else:
                A.emit(f"v_max_f32 {v(T0)}, {v(T0)}, {v(S+i)}"); i += 1
        g_allreduce(A, "v_max_f32", T0, T0+1, T0+2)
        for i in range(n):
            A.emit(f"v_sub_f32 {v(S+i)}, {v(S+i)}, {v(T0)}")
            A.emit(f"v_mul_f32 {v(S+i)}, {LOG2E:#x}, {v(S+i)}")
            A.emit(f"v_exp_f32 {v(S+i)}, {v(S+i)}")
        A.emit("s_nop 0")
        A.emit(f"v_add_f32 {v(T0)}, {v(S)}, {v(S+1)}")
        for i in range(2, n):
            A.emit(f"v_add_f32 {v(T0)}, {v(T0)}, {v(S+i)}")
        g_allreduce(A, "v_add_f32", T0, T0+1, T0+2)
        A.emit(f"v_rcp_f32 {v(T0)}, {v(T0)}")
        A.emit("s_nop 0")
        for i in range(n):
            A.emit(f"v_mul_f32 {v(S+i)}, {v(S+i)}, {v(T0)}")
        p0 = PF + 8*qt
        A.emit(f"v_cvt_pk_bf16_f32 {v(p0)}, {v(S+4)}, {v(S+5)}")
        A.emit(f"v_cvt_pk_bf16_f32 {v(p0+1)}, {v(S+6)}, {v(S+7)}")
        if qt == 0:
            A.emit(f"v_mov_b32 {v(p0+2)}, 0"); A.emit(f"v_mov_b32 {v(p0+3)}, 0")
        else:
            A.emit(f"v_cvt_pk_bf16_f32 {v(p0+2)}, {v(S+8)}, {v(S+9)}")
            A.emit(f"v_cvt_pk_bf16_f32 {v(p0+3)}, {v(S+10)}, {v(S+11)}")
        A.emit(f"v_cvt_pk_bf16_f32 {v(p0+4)}, {v(S)}, {v(S+1)}")
        A.emit(f"v_cvt_pk_bf16_f32 {v(p0+5)}, {v(S+2)}, {v(S+3)}")
        A.emit(f"v_mov_b32 {v(p0+6)}, 0"); A.emit(f"v_mov_b32 {v(p0+7)}, 0")
    A.emit("s_waitcnt vmcnt(0)")
    for T in range(8):
        src = 216 + 4*(T >> 1) + 2*(T & 1)
        A.emit(f"v_mov_b32 {v(VM+4*T)}, {v(src)}"); A.emit(f"v_mov_b32 {v(VM+4*T+1)}, {v(src+1)}")
        A.emit(f"v_mov_b32 {v(VM+4*T+2)}, 0"); A.emit(f"v_mov_b32 {v(VM+4*T+3)}, 0")
    A.emit("s_nop 1")
    for qt in range(2):
        for T in range(8):
            d = 32 + (qt*8 + T)*4
            A.emit(f"v_mfma_f32_16x16x32_bf16 {v(d,4)}, {v(VT+4*T,4)}, {v(PF+8*qt,4)}, 0")
        for T in range(8):
            d = 32 + (qt*8 + T)*4
            A.emit(f"v_mfma_f32_16x16x32_bf16 {v(d,4)}, {v(VM+4*T,4)}, {v(PF+8*qt+4,4)}, {v(d,4)}")
    A.emit("s_nop 7")
    A.emit(f"s_add_u32 s22, s20, {WS['O']}")
    A.emit(f"s_add_u32 s23, s20, {WS['O'] + 0x20000}")
    for qt in range(2):
        for u in range(4):
            d = 32 + (qt*8 + 2*u)*4
            o = 176 + 4*(qt*4+u)
            for i in range(4):
                A.emit(f"v_cvt_pk_bf16_f32 {v(o+i)}, {v(d+2*i)}, {v(d+2*i+1)}")
            A.emit(f"buffer_store_dwordx4 {v(o,4)}, v7, s[12:15], s{22+qt} offen offset:{64*u}")
    A.emit(f"s_add_u32 s6, s6, {NHELP*4}")
    A.emit("s_cmp_lt_u32 s6, 2048")
    A.emit("s_cbranch_scc1 a_unit")


def gen_main(A):
    name = "main_kernel"
    kernel_begin(A, name)
    A.emit(f"s_cmp_ge_u32 s2, {NWG}")
    A.emit("s_cbranch_scc1 main_end")
    load_ptr(A, 4, "ws"); load_ptr(A, 8, "dbg")
    A.emit("v_lshrrev_b32 v1, 6, v0")
    A.emit("v_and_b32 v2, 63, v0")
    A.emit("s_nop 0")
    A.emit("v_readfirstlane_b32 s3, v1")
    A.emit("s_getreg_b32 s10, hwreg(HW_REG_XCC_ID)")
    A.emit("s_and_b32 s10, s10, 15")
    A.emit("s_waitcnt lgkmcnt(0)")
    make_srd(A, 12, 4, WS_BYTES - 1)
    make_srd(A, 16, 8, 256)
    gen_role(A)
    A.emit("s_cmp_ge_u32 s6, 32")
    A.emit("s_cbranch_scc1 main_helper")
    gen_worker(A)
    A.label("main_helper")
    gen_helper_qkv(A)
    gen_helper_attn(A)
    A.label("main_end")
    A.emit("s_endpgm")
    return name, kernel_desc(name, 256, agpr=256), f"grid=({NWG},1,1) block=(256,1,1) lds={LDS_TOTAL + 1024}"
```

```python
from common import *

N_MOD_WG = 24
N_CLR_WG = 32
REPACK = [
    ("Wq", "Wq", 512, 4096, WS["WQKV"] + 0 * 256 * 16384, 16384, 1024, 0),
    ("Wk", "Wk", 512, 4096, WS["WQKV"] + 1 * 256 * 16384, 16384, 1024, 0),
    ("Wv", "Wv", 512, 4096, WS["WQKV"] + 2 * 256 * 16384, 16384, 1024, 0),
    ("Wo", "Wo", 4096, 512, WS["WO"], 1024, 32768, 1),
    ("w1", "w1", 512, 1792, WS["W1"], 16384, 1024, 0),
    ("w2", "w2", 1792, 512, WS["W2"], 1024, 32768, 1),
]
def repack_wgs():
    out = []
    for (_, _, K, N, *_r) in REPACK:
        units = (K // 32) * (N // 64)
        assert units % 4 == 0
        out.append(units // 4)
    return out
PREP_GRID = N_MOD_WG + N_CLR_WG + sum(repack_wgs())

def gen_prep(A):
    name = "prep_kernel"
    kernel_begin(A, name)
    Lend = "prep_end"
    A.emit("s_load_dwordx2 s[4:5], s[0:1], 128")
    A.emit(f"s_cmp_ge_u32 s2, {PREP_GRID}")
    A.emit(f"s_cbranch_scc1 {Lend}")
    A.emit("v_lshrrev_b32 v1, 6, v0")
    A.emit("v_and_b32 v2, 63, v0")
    A.emit("s_nop 0")
    A.emit("v_readfirstlane_b32 s3, v1")
    A.emit(f"s_cmp_ge_u32 s2, {N_MOD_WG}")
    A.emit("s_cbranch_scc1 prep_not_mod")
    load_ptr(A, 6, "c"); load_ptr(A, 8, "wmod")
    A.emit("s_waitcnt lgkmcnt(0)")
    make_srd(A, 12, 6, 1024)
    make_srd(A, 16, 8, 512 * 3072 * 2)
    make_srd(A, 20, 4, 3072 * 4, WS["MOD"])
    A.emit("s_lshl_b32 s24, s3, 8")
    A.emit("v_lshlrev_b32 v3, 1, v2")
    A.emit("buffer_load_ushort v4, v3, s[12:15], s24 offen")
    A.emit("buffer_load_ushort v5, v3, s[12:15], s24 offen offset:128")
    A.emit("s_waitcnt vmcnt(0)")
    for r in (4, 5):
        A.emit(f"v_lshlrev_b32 v{r}, 16, v{r}")
        A.emit(f"v_mul_f32 v6, 0xbfb8aa3b, v{r}")
        A.emit("v_exp_f32 v6, v6")
        A.emit("s_nop 0")
        A.emit("v_add_f32 v6, 1.0, v6")
        A.emit("v_rcp_f32 v6, v6")
        A.emit("s_nop 0")
        A.emit(f"v_mul_f32 v{r}, v{r}, v6")
        round_bf16(A, r, 6)
    A.emit("s_lshl_b32 s25, s2, 8")
    A.emit("v_lshl_add_u32 v3, v2, 2, s25")
    A.emit("s_mul_i32 s26, s3, 786432")
    A.emit("v_mov_b32 v10, 0")
    A.emit("v_mov_b32 v11, 0")
    for i in range(128):
        A.emit(f"buffer_load_dword v{16+i}, v3, s[16:19], s26 offen")
        A.emit("s_add_u32 s26, s26, 6144")
    for b in range(8):
        for i in range(16):
            row = b * 16 + i
            A.emit(f"v_readlane_b32 s{32+i}, v{4 + (row >> 6)}, {row & 63}")
        A.emit(f"s_waitcnt vmcnt({max(0, min(63, 128 - 16*(b+1)))})")
        for i in range(16):
            r = 16 + b*16 + i
            A.emit(f"v_lshlrev_b32 v12, 16, v{r}")
            A.emit(f"v_and_b32 v13, 0xffff0000, v{r}")
            A.emit(f"v_fmac_f32 v10, s{32+i}, v12")
            A.emit(f"v_fmac_f32 v11, s{32+i}, v13")
    A.emit("v_lshlrev_b32 v12, 3, v0")
    A.emit("ds_write_b64 v12, v[10:11]")
    A.emit("s_waitcnt lgkmcnt(0)")
    A.emit("s_barrier")
    A.emit("s_cmp_lg_u32 s3, 0")
    A.emit(f"s_cbranch_scc1 {Lend}")
    A.emit("ds_read_b64 v[16:17], v12 offset:512")
    A.emit("ds_read_b64 v[18:19], v12 offset:1024")
    A.emit("ds_read_b64 v[20:21], v12 offset:1536")
    A.emit("s_waitcnt lgkmcnt(0)")
    for r in (16, 18, 20):
        A.emit(f"v_add_f32 v10, v10, v{r}")
        A.emit(f"v_add_f32 v11, v11, v{r+1}")
    round_bf16_2(A, 10, 11, 12)
    A.emit("v_lshlrev_b32 v3, 1, v3")
    A.emit("buffer_store_dwordx2 v[10:11], v3, s[20:23], 0 offen")
    A.emit(f"s_branch {Lend}")
    A.label("prep_not_mod")
    A.emit(f"s_cmp_ge_u32 s2, {N_MOD_WG + N_CLR_WG}")
    A.emit("s_cbranch_scc1 prep_repack")
    load_ptr(A, 6, "mem0")
    A.emit("s_waitcnt lgkmcnt(0)")
    make_srd(A, 12, 4, 65 * 8192, WS["MEM"])
    make_srd(A, 16, 4, RING * 524288, WS["PART"])
    make_srd(A, 20, 6, 8192)
    A.emit(f"s_sub_u32 s24, s2, {N_MOD_WG}")
    A.emit("v_mov_b32 v4, -1"); A.emit("v_mov_b32 v5, -1"); A.emit("v_mov_b32 v6, -1"); A.emit("v_mov_b32 v7, -1")
    A.emit("s_lshl_b32 s25, s24, 14")
    A.emit("s_add_u32 s25, s25, 8192")
    A.emit("v_lshlrev_b32 v3, 4, v0")
    for i in range(4):
        A.emit(f"buffer_store_dwordx4 v[4:7], v3, s[12:15], s25 offen")
        A.emit("s_add_u32 s25, s25, 4096")
    A.emit(f"s_mul_i32 s25, s24, {RING * 16384}")
    for i in range(RING * 4):
        A.emit(f"buffer_store_dwordx4 v[4:7], v3, s[16:19], s25 offen")
        A.emit("s_add_u32 s25, s25, 4096")
    A.emit("s_cmp_lg_u32 s24, 2")
    A.emit("s_cbranch_scc1 prep_nosync")
    make_srd(A, 28, 4, 1024, WS["SYNC"])
    A.emit("v_mov_b32 v8, 0")
    A.emit("v_lshlrev_b32 v9, 2, v0")
    A.emit("buffer_store_dword v8, v9, s[28:31], 0 offen")
    A.label("prep_nosync")
    A.emit("s_cmp_ge_u32 s24, 2")
    A.emit(f"s_cbranch_scc1 {Lend}")
    A.emit("s_lshl_b32 s25, s24, 12")
    A.emit("buffer_load_dwordx4 v[8:11], v3, s[20:23], s25 offen")
    A.emit("s_lshl_b32 s26, s24, 8")
    A.emit("v_add_u32 v12, s26, v0")
    A.emit("v_lshrrev_b32 v13, 6, v12")
    A.emit("v_bfe_u32 v14, v12, 1, 5")
    A.emit("v_and_b32 v15, 1, v12")
    A.emit("v_lshlrev_b32 v14, 8, v14")
    A.emit("v_lshl_add_u32 v14, v13, 5, v14")
    A.emit("v_lshl_add_u32 v14, v15, 4, v14")
    A.emit("s_waitcnt vmcnt(0)")
    A.emit("buffer_store_dwordx4 v[8:11], v14, s[12:15], 0 offen")
    A.emit(f"s_branch {Lend}")
    A.label("prep_repack")
    A.emit(f"s_sub_u32 s24, s2, {N_MOD_WG + N_CLR_WG}")
    wgs = repack_wgs()
    base = 0
    for idx, (nm, ptr, K, N, doff, Sct, St, pi) in enumerate(REPACK):
        nxt = f"prep_rp_{idx+1}"
        A.emit(f"s_cmp_ge_u32 s24, {base + wgs[idx]}")
        A.emit(f"s_cbranch_scc1 {nxt}")
        load_ptr(A, 6, ptr)
        A.emit(f"s_sub_u32 s25, s24, {base}")
        A.emit("s_lshl_b32 s25, s25, 2")
        A.emit("s_add_u32 s25, s25, s3")
        nb = N // 64
        if nb & (nb - 1) == 0:
            sh = nb.bit_length() - 1
            A.emit(f"s_lshr_b32 s26, s25, {sh}")
            A.emit(f"s_and_b32 s27, s25, {nb-1}")
        else:
            magic = (1 << 32) // nb + 1
            A.emit(f"s_mul_hi_u32 s26, s25, {magic}")
            A.emit(f"s_mul_i32 s27, s26, {nb}")
            A.emit("s_sub_u32 s27, s25, s27")
        A.emit("s_waitcnt lgkmcnt(0)")
        make_srd(A, 12, 6, K * N * 2)
        A.emit(f"s_mul_i32 s28, s26, {32 * N * 2}")
        A.emit("s_lshl_b32 s29, s27, 7")
        A.emit("s_add_u32 s28, s28, s29")
        A.emit(f"s_mov_b32 s30, {N * 2 * 8}")
        A.emit(f"s_mov_b32 s31, {N * 2}")
        A.emit(f"s_mul_i32 s32, s27, {4 * Sct}")
        A.emit(f"s_mul_i32 s33, s26, {St}")
        A.emit("s_add_u32 s32, s32, s33")
        A.emit(f"s_add_u32 s32, s32, {doff}")
        A.emit(f"s_mov_b32 s33, {Sct}")
        A.emit(f"s_mov_b32 s34, {pi}")
        A.emit("s_branch prep_rp_go")
        A.label(nxt)
        base += wgs[idx]
    A.emit(f"s_branch {Lend}")
    A.label("prep_rp_go")
    make_srd(A, 16, 4, WS_BYTES - 1)
    A.emit("v_lshrrev_b32 v3, 3, v2")
    A.emit("v_mul_lo_u32 v3, v3, s31")
    A.emit("v_and_b32 v4, 7, v2")
    A.emit("v_lshl_add_u32 v3, v4, 4, v3")
    for i in range(4):
        A.emit(f"buffer_load_dwordx4 v[{8+4*i}:{11+4*i}], v3, s[12:15], s28 offen")
        A.emit("s_add_u32 s28, s28, s30")
    A.emit("s_lshl_b32 s35, s3, 12")
    A.emit("v_lshrrev_b32 v3, 3, v2")
    A.emit("v_lshlrev_b32 v3, 7, v3")
    A.emit("v_lshl_add_u32 v3, v4, 4, v3")
    A.emit("v_add_u32 v3, s35, v3")
    A.emit("s_waitcnt vmcnt(0)")
    for i in range(4):
        A.emit(f"ds_write_b128 v3, v[{8+4*i}:{11+4*i}] offset:{1024*i}")
    A.emit("v_lshrrev_b32 v5, 4, v2")
    A.emit("v_bfe_u32 v6, v2, 2, 2")
    A.emit("v_and_b32 v7, 3, v2")
    A.emit("s_cmp_eq_u32 s34, 0")
    A.emit("s_cselect_b32 s36, 3, 2")
    A.emit("s_cselect_b32 s37, 4, 16")
    A.emit("s_lshl_b32 s37, s37, 7")
    A.emit("v_lshlrev_b32 v5, s36, v5")
    A.emit("v_add_u32 v5, v5, v6")
    A.emit("v_lshlrev_b32 v5, 7, v5")
    A.emit("v_lshl_add_u32 v5, v7, 3, v5")
    A.emit("v_add_u32 v5, s35, v5")
    A.emit("v_add_u32 v6, s37, v5")
    A.emit("s_waitcnt lgkmcnt(0)")
    for ct in range(4):
        A.emit(f"ds_read_b64_tr_b16 v[{24+4*ct}:{25+4*ct}], v5 offset:{32*ct}")
        A.emit(f"ds_read_b64_tr_b16 v[{26+4*ct}:{27+4*ct}], v6 offset:{32*ct}")
    A.emit("v_lshlrev_b32 v3, 4, v2")
    A.emit("s_waitcnt lgkmcnt(0)")
    for ct in range(4):
        A.emit(f"buffer_store_dwordx4 v[{24+4*ct}:{27+4*ct}], v3, s[16:19], s32 offen")
        A.emit("s_add_u32 s32, s32, s33")
    A.label(Lend)
    A.emit("s_endpgm")
    return name, kernel_desc(name, 144), f"grid=({PREP_GRID},1,1) block=(256,1,1) lds=16384"

def gen_ln1(A):
    name = "ln1_kernel"
    kernel_begin(A, name)
    A.emit("s_cmp_ge_u32 s2, 128")
    A.emit("s_cbranch_scc1 ln1_end")
    load_ptr(A, 4, "ws"); load_ptr(A, 6, "x")
    A.emit("v_lshrrev_b32 v1, 6, v0")
    A.emit("v_and_b32 v2, 63, v0")
    A.emit("s_nop 0")
    A.emit("v_readfirstlane_b32 s3, v1")
    A.emit("s_waitcnt lgkmcnt(0)")
    make_srd(A, 12, 6, 2048 * 1024)
    make_srd(A, 16, 4, 3072 * 4, WS["MOD"])
    make_srd(A, 20, 4, 2048 * 1024, WS["H"])
    A.emit("v_lshlrev_b32 v3, 5, v2")
    A.emit("buffer_load_dwordx4 v[40:43], v3, s[16:19], 0 offen")
    A.emit("buffer_load_dwordx4 v[44:47], v3, s[16:19], 0 offen offset:16")
    A.emit("buffer_load_dwordx4 v[48:51], v3, s[16:19], 0 offen offset:2048")
    A.emit("buffer_load_dwordx4 v[52:55], v3, s[16:19], 0 offen offset:2064")
    A.emit("s_lshl_b32 s24, s2, 2")
    A.emit("s_add_u32 s24, s24, s3")
    A.emit("s_lshl_b32 s24, s24, 12")
    A.emit("v_lshlrev_b32 v3, 4, v2")
    for i in range(4):
        A.emit(f"buffer_load_dwordx4 v[{60+4*i}:{63+4*i}], v3, s[12:15], s24 offen offset:{1024*i}")
    A.emit("s_waitcnt vmcnt(4)")
    for i in range(0, 8, 2):
        A.emit(f"v_add_f32 v{48+i}, 1.0, v{48+i}")
        A.emit(f"v_add_f32 v{49+i}, 1.0, v{49+i}")
        round_bf16_2(A, 48+i, 49+i, 4)
    for i in range(4):
        A.emit(f"s_waitcnt vmcnt({3-i})")
        unpack8(A, 8, 60 + 4*i)
        layernorm8(A, 8, 20)
        for j in range(0, 8, 2):
            A.emit(f"v_mul_f32 v{8+j}, v{8+j}, v{48+j}")
            A.emit(f"v_mul_f32 v{9+j}, v{9+j}, v{49+j}")
            round_bf16_2(A, 8+j, 9+j, 4)
            A.emit(f"v_add_f32 v{8+j}, v{8+j}, v{40+j}")
            A.emit(f"v_add_f32 v{9+j}, v{9+j}, v{41+j}")
        pack8(A, 80 + 4*i, 8)
        A.emit(f"buffer_store_dwordx4 v[{80+4*i}:{83+4*i}], v3, s[20:23], s24 offen offset:{1024*i}")
    A.label("ln1_end")
    A.emit("s_endpgm")
    return name, kernel_desc(name, 96), "grid=(128,1,1) block=(256,1,1) lds=0"
```

```python
from common import *

RD = 8
STAMP = False

def gen_qkv(A):
    name = "qkv_kernel"
    kernel_begin(A, name)
    A.emit("s_cmp_ge_u32 s2, 256")
    A.emit("s_cbranch_scc1 qkv_end")
    load_ptr(A, 4, "ws")
    if STAMP: A.emit("s_memtime s[60:61]")
    A.emit("v_lshrrev_b32 v1, 6, v0")
    A.emit("v_and_b32 v2, 63, v0")
    A.emit("s_nop 0")
    A.emit("v_readfirstlane_b32 s3, v1")
    A.emit("s_lshr_b32 s6, s2, 4")
    A.emit("s_and_b32 s7, s2, 7")
    A.emit("s_lshl_b32 s7, s7, 1")
    A.emit("s_bfe_u32 s8, s2, 0x10003")
    A.emit("s_add_u32 s7, s7, s8")
    A.emit("s_waitcnt lgkmcnt(0)")
    make_srd(A, 12, 4, 2048 * 1024, WS["H"])
    make_srd(A, 16, 4, 768 * 16384, WS["WQKV"])
    make_srd(A, 20, 4, 3 * 0x1000000, WS["Q"])
    A.emit("v_and_b32 v3, 15, v2")
    A.emit("v_lshrrev_b32 v4, 4, v2")
    A.emit("v_lshlrev_b32 v5, 10, v3")
    A.emit("v_lshl_add_u32 v5, v4, 4, v5")
    A.emit("s_lshl_b32 s24, s6, 17")
    A.emit("s_lshl_b32 s25, s3, 15")
    A.emit("s_add_u32 s24, s24, s25")
    A.emit("v_lshlrev_b32 v6, 4, v2")
    A.emit("v_add_u32 v7, s25, v6")
    A.emit("s_mul_i32 s26, s7, 12")
    A.emit("s_mul_i32 s27, s3, 3")
    A.emit("s_add_u32 s26, s26, s27")
    A.emit("s_mov_b32 s27, 0")
    A.emit("s_lshl_b32 s28, s26, 16")
    for c in range(1, 4):
        A.emit(f"s_add_u32 s{28+c}, s28, {16384*c}")
    for half in range(2):
        for t in range(16):
            A.emit(f"buffer_load_dwordx4 {v(64+64*half+4*t,4)}, v5, s[12:15], s24 offen offset:{64*t}")
        A.emit("s_add_u32 s24, s24, 16384")
    A.emit("v_mov_b32 v8, v6")
    def bload(stage):
        for c in range(4):
            A.emit(f"buffer_load_dwordx4 {a(16*stage+4*c,4)}, v8, s[16:19], s{28+c} offen")
    for st in range(RD - 1):
        bload(st)
        A.emit("v_add_u32 v8, 1024, v8")
    nb = 4 * (RD - 1)
    for i in range(32):
        A.emit(f"s_waitcnt vmcnt({31 - i + nb})")
        A.emit(f"ds_write_b128 v7, {v(64+4*i,4)} offset:{(i>>4)*16384 + (i&15)*1024}")
    ACC, AB = 128, 64
    A.emit("s_waitcnt lgkmcnt(0)")
    A.emit("s_barrier")
    A.emit("v_add_u32 v9, 0x10000, v6")
    if STAMP: A.emit("s_memtime s[62:63]")
    A.label("qkv_group")
    for rt in range(8):
        base = "v6" if rt < 4 else "v9"
        A.emit(f"ds_read_b128 {v(AB+4*rt,4)}, {base} offset:{(rt&3)*16384}")
    A.emit("s_cmp_ge_u32 s26, 128")
    A.emit("s_cbranch_scc1 qkv_vbody")
    for isv in (0, 1):
        if isv: A.label("qkv_vbody")
        for t in range(16):
            cb, nbuf = t & 1, (t + 1) & 1
            tp = t + RD - 1
            if tp == 16:
                A.emit("v_mov_b32 v8, v6")
                A.emit("s_cmp_lt_u32 s27, 2")
                A.emit("s_cselect_b32 s33, 0x10000, 0")
                for c in range(4):
                    A.emit(f"s_add_u32 s{28+c}, s{28+c}, s33")
            bload(tp % RD)
            A.emit("v_add_u32 v8, 1024, v8")
            if t < 15:
                for rt in range(8):
                    base = "v6" if rt < 4 else "v9"
                    A.emit(f"ds_read_b128 {v(AB+32*nbuf+4*rt,4)}, {base} offset:{(rt&3)*16384 + (t+1)*1024}")
                A.emit(f"s_waitcnt vmcnt({4*(RD-1)}) lgkmcnt(8)")
            else:
                A.emit(f"s_waitcnt vmcnt({4*(RD-1)}) lgkmcnt(0)")
            for rt in range(8):
                for c in range(4):
                    d = ACC + (rt * 4 + c) * 4
                    af = v(AB+32*cb+4*rt, 4)
                    bf = a(16*(t % RD) + 4*c, 4)
                    src2 = "0" if t == 0 else v(d, 4)
                    if isv:
                        A.emit(f"v_mfma_f32_16x16x32_bf16 {v(d,4)}, {af}, {bf}, {src2}")
                    else:
                        A.emit(f"v_mfma_f32_16x16x32_bf16 {v(d,4)}, {bf}, {af}, {src2}")
        A.emit("s_nop 7")
        A.emit("s_nop 1")
        if STAMP: A.emit("s_memtime s[64:65]")
        if not isv:
            A.emit("s_lshr_b32 s34, s26, 6")
            A.emit("s_lshl_b32 s34, s34, 24")
            A.emit("s_and_b32 s35, s26, 63")
            A.emit("s_lshl_b32 s35, s35, 7")
            A.emit("s_add_u32 s34, s34, s35")
            A.emit("s_lshl_b32 s35, s6, 20")
            A.emit("s_add_u32 s34, s34, s35")
            A.emit("v_lshlrev_b32 v10, 13, v3")
            A.emit("v_lshl_add_u32 v10, v4, 4, v10")
            for rt in range(8):
                for p in range(2):
                    d0 = ACC + (rt * 4 + 2 * p) * 4
                    o = 12 + 4 * ((rt * 2 + p) & 3)
                    for i in range(4):
                        A.emit(f"v_cvt_pk_bf16_f32 v{o+i}, v{d0+2*i}, v{d0+2*i+1}")
                    A.emit(f"buffer_store_dwordx4 v[{o}:{o+3}], v10, s[20:23], s34 offen offset:{64*p}")
                A.emit("s_add_u32 s34, s34, 0x20000")
            A.emit("s_branch qkv_next")
        else:
            A.emit("s_sub_u32 s34, s26, 128")
            A.emit("s_lshl_b32 s34, s34, 12")
            A.emit("s_lshl_b32 s35, s6, 20")
            A.emit("s_add_u32 s34, s34, s35")
            A.emit("s_add_u32 s34, s34, 0x2000000")
            A.emit("v_lshlrev_b32 v10, 6, v3")
            A.emit("v_lshl_add_u32 v10, v4, 4, v10")
            for sig in range(4):
                for c in range(4):
                    d0 = ACC + ((2 * sig) * 4 + c) * 4
                    d1 = ACC + ((2 * sig + 1) * 4 + c) * 4
                    o = 12 + 4 * (c & 3)
                    A.emit(f"v_cvt_pk_bf16_f32 v{o}, v{d0}, v{d0+1}")
                    A.emit(f"v_cvt_pk_bf16_f32 v{o+1}, v{d0+2}, v{d0+3}")
                    A.emit(f"v_cvt_pk_bf16_f32 v{o+2}, v{d1}, v{d1+1}")
                    A.emit(f"v_cvt_pk_bf16_f32 v{o+3}, v{d1+2}, v{d1+3}")
                    A.emit(f"buffer_store_dwordx4 v[{o}:{o+3}], v10, s[20:23], s34 offen offset:{1024*c}")
                A.emit("s_add_u32 s34, s34, 0x40000")
    A.label("qkv_next")
    if STAMP:
        A.emit("s_memtime s[66:67]")
        A.emit("s_cmp_lg_u32 s27, 0")
        A.emit("s_cbranch_scc1 qkv_nost")
        A.emit("s_cmp_lg_u32 s2, 0")
        A.emit("s_cbranch_scc1 qkv_nost")
        A.emit("s_cmp_lg_u32 s3, 0")
        A.emit("s_cbranch_scc1 qkv_nost")
        A.emit("s_load_dwordx2 s[44:45], s[0:1], 120")
        A.emit("s_waitcnt lgkmcnt(0)")
        make_srd(A, 48, 44, 256)
        for i in range(4):
            A.emit(f"v_mov_b32 v12, s{60+2*i}")
            A.emit(f"v_mov_b32 v13, {4*i}")
            A.emit("buffer_store_dword v12, v13, s[48:51], 0 offen")
        A.label("qkv_nost")
    A.emit("s_add_u32 s26, s26, 1")
    A.emit("s_add_u32 s27, s27, 1")
    A.emit("s_cmp_lt_u32 s27, 3")
    A.emit("s_cbranch_scc1 qkv_group")
    if STAMP:
        A.emit("s_memtime s[68:69]")
        A.emit("s_cmp_lg_u32 s2, 0")
        A.emit("s_cbranch_scc1 qkv_end")
        A.emit("s_cmp_lg_u32 s3, 0")
        A.emit("s_cbranch_scc1 qkv_end")
        A.emit("s_waitcnt lgkmcnt(0)")
        A.emit("v_mov_b32 v12, s68")
        A.emit("v_mov_b32 v13, 16")
        A.emit("buffer_store_dword v12, v13, s[48:51], 0 offen")
    A.label("qkv_end")
    A.emit("s_endpgm")
    return name, kernel_desc(name, 256, agpr=16*RD), "grid=(256,1,1) block=(256,1,1) lds=131072"
```

```python
from common import *

SCALE = 0x3DB504F3
SPIN = 200000
LDS_SC = 131072
LDS_OF = LDS_SC + 12288
LDS_MB = LDS_OF + 4096
LDS_TOTAL = LDS_MB + 8192
STAMP = False
NWG = 256

def stamp(A, i):
    if STAMP:
        A.emit(f"s_memtime s[{60+2*i}:{61+2*i}]")

def sentinel_check(A, base, n, tmp, Lretry, Lok, sspin):
    A.emit(f"v_max3_u32 {v(tmp)}, {v(base)}, {v(base+1)}, {v(base+2)}")
    i = 3
    while i < n:
        if i + 1 < n:
            A.emit(f"v_max3_u32 {v(tmp)}, {v(tmp)}, {v(base+i)}, {v(base+i+1)}"); i += 2
        else:
            A.emit(f"v_max_u32 {v(tmp)}, {v(tmp)}, {v(base+i)}"); i += 1
    A.emit(f"v_cmp_eq_u32 vcc, -1, {v(tmp)}")
    A.emit(f"s_cbranch_vccz {Lok}")
    A.emit(f"s_add_u32 {s(sspin)}, {s(sspin)}, 1")
    A.emit(f"s_cmp_lt_u32 {s(sspin)}, {SPIN}")
    A.emit(f"s_cbranch_scc1 {Lretry}")

def interleave(A, valu, mfma, every):
    mi = 0
    for i, ins in enumerate(valu):
        A.emit(ins)
        if (i + 1) % every == 0 and mi < len(mfma):
            A.emit(mfma[mi]); mi += 1
    while mi < len(mfma):
        A.emit(mfma[mi]); mi += 1

class L:
    def __init__(self): self.l = []
    def emit(self, s_): self.l.append(s_)

def softmax6_list(S, t, smask, sscale):
    B = L()
    def red(op):
        B.emit("s_nop 1")
        B.emit(f"{op}_dpp {v(t)}, {v(t)}, {v(t)} row_ror:8 row_mask:0xf bank_mask:0xf")
        g_allreduce(B, op, t, t+1, t+2)
    for i in range(0, 6, 2):
        round_bf16_2(B, S+i, S+i+1, t)
    for i in range(0, 6, 2):
        B.emit(f"v_pk_mul_f32 {v(S+i,2)}, {v(S+i,2)}, {s(sscale,2)}")
    for i in range(0, 6, 2):
        round_bf16_2(B, S+i, S+i+1, t)
    B.emit(f"v_mov_b32 {v(t)}, 0xff800000")
    for i in range(4):
        B.emit(f"v_cndmask_b32 {v(S+i)}, {v(S+i)}, {v(t)}, {s(smask,2)}")
    B.emit(f"v_max3_f32 {v(t)}, {v(S)}, {v(S+1)}, {v(S+2)}")
    B.emit(f"v_max3_f32 {v(t)}, {v(t)}, {v(S+3)}, {v(S+4)}")
    B.emit(f"v_max_f32 {v(t)}, {v(t)}, {v(S+5)}")
    red("v_max_f32")
    for i in range(6):
        B.emit(f"v_sub_f32 {v(S+i)}, {v(S+i)}, {v(t)}")
    for i in range(0, 6, 2):
        B.emit(f"v_pk_mul_f32 {v(S+i,2)}, {v(S+i,2)}, {s(sscale+2,2)}")
    for i in range(6):
        B.emit(f"v_exp_f32 {v(S+i)}, {v(S+i)}")
    B.emit("s_nop 0")
    B.emit(f"v_add_f32 {v(t)}, {v(S)}, {v(S+1)}")
    for i in range(2, 6):
        B.emit(f"v_add_f32 {v(t)}, {v(t)}, {v(S+i)}")
    red("v_add_f32")
    B.emit(f"v_rcp_f32 {v(t)}, {v(t)}")
    B.emit("s_nop 0")
    for i in range(6):
        B.emit(f"v_mul_f32 {v(S+i)}, {v(S+i)}, {v(t)}")
    return B.l

def gen_rec(A):
    name = "rec_kernel"
    kernel_begin(A, name)
    A.emit(f"s_cmp_ge_u32 s2, {NWG}")
    A.emit("s_cbranch_scc1 rec_end")
    load_ptr(A, 4, "ws"); load_ptr(A, 8, "dbg")
    if STAMP: A.emit("s_memrealtime s[80:81]")
    A.emit("v_lshrrev_b32 v1, 6, v0")
    A.emit("v_and_b32 v2, 63, v0")
    A.emit("s_nop 0")
    A.emit("v_readfirstlane_b32 s3, v1")
    A.emit("s_getreg_b32 s10, hwreg(HW_REG_XCC_ID)")
    A.emit("s_and_b32 s10, s10, 15")
    A.emit("s_waitcnt lgkmcnt(0)")
    make_srd(A, 12, 4, WS_BYTES - 1)
    make_srd(A, 16, 8, 256)
    A.emit("s_cmp_lg_u32 s3, 0")
    A.emit("s_cbranch_scc1 rec_role_wait")
    A.emit("v_cmp_eq_u32 vcc, 0, v2")
    A.emit("s_and_saveexec_b64 s[42:43], vcc")
    A.emit("v_mov_b32 v10, 1")
    A.emit("s_lshl_b32 s20, s10, 2")
    A.emit("v_mov_b32 v11, s20")
    A.emit("buffer_atomic_add v10, v11, s[16:19], 0 offen sc0 sc1")
    A.emit("s_waitcnt vmcnt(0)")
    A.emit("v_mov_b32 v12, 1")
    A.emit("v_mov_b32 v11, 64")
    A.emit("buffer_atomic_add v12, v11, s[16:19], 0 offen sc0 sc1")
    A.emit("s_waitcnt vmcnt(0)")
    A.emit("s_nop 0")
    A.emit("v_readfirstlane_b32 s21, v10")
    A.emit("v_readfirstlane_b32 s22, v12")
    A.emit("v_mov_b32 v11, 68")
    A.emit("s_cmp_lg_u32 s21, 31")
    A.emit("s_cbranch_scc1 rec_role_a")
    A.emit("s_add_u32 s20, s10, 1")
    A.emit("v_mov_b32 v14, s20")
    A.emit("v_mov_b32 v15, 0")
    A.emit("buffer_atomic_cmpswap v[14:15], v11, s[16:19], 0 offen sc1")
    A.emit("s_waitcnt vmcnt(0)")
    A.label("rec_role_a")
    A.emit(f"s_cmp_lg_u32 s22, {NWG-1}")
    A.emit("s_cbranch_scc1 rec_role_b")
    A.emit("v_mov_b32 v14, 100")
    A.emit("v_mov_b32 v15, 0")
    A.emit("buffer_atomic_cmpswap v[14:15], v11, s[16:19], 0 offen sc1")
    A.emit("s_waitcnt vmcnt(0)")
    A.label("rec_role_b")
    A.emit("s_mov_b32 s30, 0")
    A.label("rec_role_poll")
    A.emit("buffer_load_dword v14, v11, s[16:19], 0 offen sc1")
    A.emit("s_waitcnt vmcnt(0)")
    A.emit("s_nop 0")
    A.emit("v_readfirstlane_b32 s23, v14")
    A.emit("s_cmp_lg_u32 s23, 0")
    A.emit("s_cbranch_scc1 rec_role_c")
    A.emit("s_add_u32 s30, s30, 1")
    A.emit(f"s_cmp_lt_u32 s30, {SPIN}")
    A.emit("s_cbranch_scc1 rec_role_poll")
    A.label("rec_role_c")
    A.emit("s_mov_b32 s24, 999")
    A.emit("s_mov_b32 s25, 0")
    A.emit("s_add_u32 s20, s10, 1")
    A.emit("s_cmp_eq_u32 s23, s20")
    A.emit("s_cselect_b32 s24, s21, s24")
    A.emit("s_cmp_eq_u32 s23, 100")
    A.emit("s_cselect_b32 s24, s22, s24")
    A.emit("s_cselect_b32 s25, 1, 0")
    A.emit("s_lshl_b32 s20, s25, 16")
    A.emit("s_or_b32 s20, s20, s24")
    A.emit("v_mov_b32 v14, s20")
    A.emit("v_mov_b32 v15, 0")
    A.emit("ds_write_b32 v15, v14")
    A.emit("s_mov_b64 exec, s[42:43]")
    A.emit("s_waitcnt lgkmcnt(0)")
    A.label("rec_role_wait")
    A.emit("s_barrier")
    A.emit("v_mov_b32 v15, 0")
    A.emit("ds_read_b32 v14, v15")
    A.emit("s_waitcnt lgkmcnt(0)")
    A.emit("s_nop 0")
    A.emit("v_readfirstlane_b32 s20, v14")
    A.emit("s_and_b32 s6, s20, 0xffff")
    A.emit("s_lshr_b32 s11, s20, 16")
    A.emit("s_barrier")
    A.emit("s_cmp_ge_u32 s6, 32")
    A.emit("s_cbranch_scc1 rec_end")
    if STAMP: A.emit("s_memrealtime s[82:83]")
    A.emit("v_and_b32 v3, 15, v2")
    A.emit("v_lshrrev_b32 v4, 4, v2")
    A.emit("v_and_b32 v5, 7, v2")
    A.emit("v_lshlrev_b32 v5, 5, v5")
    A.emit("v_and_b32 v1, 1, v4")
    A.emit("v_lshl_add_u32 v5, v1, 4, v5")
    A.emit("v_lshrrev_b32 v1, 1, v4")
    A.emit("v_lshl_add_u32 v5, v1, 8, v5")
    A.emit(f"v_add_u32 v5, {LDS_MB}, v5")
    A.emit("v_lshlrev_b32 v6, 4, v2")
    A.emit("v_lshlrev_b32 v7, 13, v3")
    A.emit("v_lshl_add_u32 v7, v4, 4, v7")
    A.emit("v_lshlrev_b32 v8, 6, v3")
    A.emit("v_lshl_add_u32 v8, v4, 4, v8")
    A.emit("v_bfe_u32 v9, v3, 1, 2")
    A.emit("v_lshlrev_b32 v9, 12, v9")
    A.emit("v_and_b32 v1, 1, v3")
    A.emit("v_lshl_add_u32 v9, v1, 6, v9")
    A.emit("v_lshl_add_u32 v9, v4, 4, v9")
    A.emit("v_lshrrev_b32 v1, 3, v3")
    A.emit("v_lshl_add_u32 v9, v1, 14, v9")
    A.emit("v_mov_b32 v1, 0x40000000")
    A.emit("s_mov_b32 s38, 0xfffffffc")
    A.emit("v_lshlrev_b32 v10, 3, v2")
    A.emit("v_cmp_gt_u32 vcc, 8, v2")
    A.emit("s_nop 1")
    A.emit("v_cndmask_b32 v10, v1, v10, vcc")
    A.emit("s_mov_b32 s40, 0")
    A.emit("s_mov_b32 s41, 0x00ff00ff")
    A.emit(f"s_mov_b32 s34, {SCALE:#x}"); A.emit(f"s_mov_b32 s35, {SCALE:#x}")
    A.emit(f"s_mov_b32 s36, {LOG2E:#x}"); A.emit(f"s_mov_b32 s37, {LOG2E:#x}")
    for tau in range(6):
        mat, odd = tau >> 1, tau & 1
        A.emit("s_lshl_b32 s20, s6, 3")
        A.emit("s_lshl_b32 s21, s3, 1")
        A.emit("s_add_u32 s20, s20, s21")
        A.emit(f"s_add_u32 s20, s20, {mat*256 + odd}")
        A.emit("s_lshl_b32 s20, s20, 14")
        A.emit(f"s_add_u32 s20, s20, {WS['WQKV']}")
        for t in range(16):
            dst = a(64*tau + 4*t, 4) if tau < 4 else v(128 + 64*(tau-4) + 4*t, 4)
            A.emit(f"buffer_load_dwordx4 {dst}, v6, s[12:15], s20 offen offset:{(t&3)*1024}")
            if t & 3 == 3:
                A.emit("s_add_u32 s20, s20, 4096")
    A.emit("s_lshl_b32 s20, s6, 17")
    A.emit("s_lshl_b32 s21, s3, 15")
    A.emit("s_add_u32 s20, s20, s21")
    A.emit(f"s_add_u32 s20, s20, {WS['WO']}")
    A.emit("v_add_u32 v11, s21, v6")
    for half in range(2):
        for i in range(16):
            A.emit(f"buffer_load_dwordx4 v[{64+4*i}:{67+4*i}], v6, s[12:15], s20 offen offset:{(i&3)*1024}")
            if i & 3 == 3:
                A.emit("s_add_u32 s20, s20, 4096")
        for i in range(16):
            A.emit(f"s_waitcnt vmcnt({15-i})")
            A.emit(f"ds_write_b128 v11, v[{64+4*i}:{67+4*i}] offset:{half*16384 + i*1024}")
    A.emit("s_lshl_b32 s21, s3, 13")
    A.emit("v_add_u32 v11, s21, v6")
    A.emit("v_add_u32 v0, 0x10000, v11")
    A.emit(f"v_add_u32 v1, {LDS_SC}, v6")
    A.emit("s_mul_i32 s20, s3, 3072")
    A.emit("v_add_u32 v2, s20, v1")
    A.emit("v_lshrrev_b32 v12, 3, v3")
    A.emit("v_mul_u32_u24 v13, 1920, v12")
    A.emit("v_add_u32 v4, 1024, v1")
    A.emit("v_mul_u32_u24 v14, 120, v12")
    A.emit("v_sub_u32 v4, v4, v14")
    A.emit("v_add_u32 v1, v1, v13")
    A.emit("s_lshl_b32 s31, s3, 11")
    A.emit("v_add_u32 v62, s31, v6")
    A.emit(f"v_add_u32 v62, {LDS_MB}, v62")
    A.emit("s_lshl_b32 s20, s3, 10")
    A.emit("v_add_u32 v60, s20, v6")
    A.emit(f"v_add_u32 v60, {LDS_OF}, v60")
    A.emit(f"v_add_u32 v61, {LDS_OF}, v6")
    A.emit("s_mov_b32 s7, 0")
    A.emit(f"s_mov_b32 s22, {WS['MEM']}")
    A.emit("s_lshl_b32 s23, s6, 8"); A.emit("s_lshl_b32 s20, s3, 6"); A.emit("s_add_u32 s23, s23, s20"); A.emit(f"s_add_u32 s23, s23, {WS['K']}")
    A.emit("s_lshl_b32 s24, s6, 13"); A.emit("s_lshl_b32 s20, s3, 11"); A.emit("s_add_u32 s24, s24, s20"); A.emit(f"s_add_u32 s24, s24, {WS['VT']}")
    A.emit("s_lshl_b32 s25, s6, 12"); A.emit("s_lshl_b32 s20, s3, 10"); A.emit("s_add_u32 s25, s25, s20"); A.emit(f"s_add_u32 s25, s25, {WS['KMEM']}")
    A.emit("s_lshl_b32 s26, s6, 12"); A.emit("s_lshl_b32 s20, s3, 10"); A.emit("s_add_u32 s26, s26, s20"); A.emit(f"s_add_u32 s26, s26, {WS['VMEM']}")
    A.emit("s_lshl_b32 s27, s3, 17"); A.emit("s_lshl_b32 s20, s6, 7"); A.emit("s_add_u32 s27, s27, s20"); A.emit(f"s_add_u32 s27, s27, {WS['PART']}")
    A.emit("s_lshl_b32 s28, s6, 14"); A.emit("s_lshl_b32 s20, s3, 12"); A.emit("s_add_u32 s28, s28, s20"); A.emit(f"s_add_u32 s28, s28, {WS['PART']}")
    A.emit("s_lshl_b32 s29, s6, 8"); A.emit("s_lshl_b32 s20, s3, 6"); A.emit("s_add_u32 s29, s29, s20"); A.emit("s_add_u32 s29, s29, 8192")
    def prefetch_kv():
        A.emit("s_add_u32 s20, s23, 0x20000")
        A.emit("buffer_load_dwordx4 v[36:39], v7, s[12:15], s23 offen")
        A.emit("buffer_load_dwordx4 v[40:43], v7, s[12:15], s20 offen")
        A.emit("buffer_load_dwordx4 v[44:47], v8, s[12:15], s24 offen")
        A.emit("buffer_load_dwordx4 v[48:51], v8, s[12:15], s24 offen offset:1024")
    def touch_kv():
        A.emit("s_add_u32 s20, s23, 0x40000")
        A.emit("buffer_load_dword v63, v7, s[12:15], s20 offen")
        A.emit("s_add_u32 s20, s23, 0x60000")
        A.emit("buffer_load_dword v63, v7, s[12:15], s20 offen")
        A.emit("s_add_u32 s20, s24, 0x40000")
        A.emit("buffer_load_dword v63, v8, s[12:15], s20 offen")
        A.emit("buffer_load_dword v63, v8, s[12:15], s20 offen offset:1024")
    def handoff_stores(fn, tag):
        A.emit("s_cmp_lg_u32 s11, 0")
        A.emit(f"s_cbranch_scc1 {tag}_g")
        fn("")
        A.emit(f"s_branch {tag}_e")
        A.label(f"{tag}_g")
        fn(" sc1")
        A.label(f"{tag}_e")
    A.emit("s_waitcnt vmcnt(0) lgkmcnt(0)")
    A.emit("s_barrier")
    if STAMP: A.emit("s_memrealtime s[84:85]")
    A.label("rec_step")
    stamp(A,0)
    A.emit("s_mov_b32 s30, 0")
    A.emit("s_add_u32 s21, s22, s31")
    A.label("rec_poll")
    A.emit("buffer_load_dwordx4 v[64:67], v6, s[12:15], s21 offen sc1")
    A.emit("buffer_load_dwordx4 v[68:71], v6, s[12:15], s21 offen offset:1024 sc1")
    A.emit("s_waitcnt vmcnt(0)")
    sentinel_check(A, 64, 8, 52, "rec_poll", "rec_poll_ok", 30)
    A.label("rec_poll_ok")
    A.emit("ds_write_b128 v62, v[64:67]")
    A.emit("ds_write_b128 v62, v[68:71] offset:1024")
    A.emit("s_waitcnt lgkmcnt(0)")
    A.emit("s_barrier")
    stamp(A,1)
    for t in range(16):
        A.emit(f"ds_read_b128 v[{64+4*t}:{67+4*t}], v5 offset:{512*t}")
    A.emit("s_bfe_u32 s20, s7, 0x10001")
    A.emit("s_lshl_b32 s39, 1, s20")
    A.emit("v_mov_b32 v63, s39")
    A.emit("s_xor_b32 s39, s39, 3")
    A.emit("s_add_u32 s20, s23, 0x20000")
    pre = ["buffer_load_dwordx4 v[36:39], v7, s[12:15], s23 offen",
           "buffer_load_dwordx4 v[40:43], v7, s[12:15], s20 offen",
           "buffer_load_dwordx4 v[44:47], v8, s[12:15], s24 offen",
           "buffer_load_dwordx4 v[48:51], v8, s[12:15], s24 offen offset:1024"]
    for t in range(16):
        A.emit(f"s_waitcnt lgkmcnt({15-t})")
        for tau in range(4):
            d = 12 + 4*tau
            c = "0" if t == 0 else v(d, 4)
            A.emit(f"v_mfma_f32_16x16x32_bf16 {v(d,4)}, {a(64*tau+4*t,4)}, {v(64+4*t,4)}, {c}")
        if t < 4:
            A.emit(pre[t])
    def vm(t):
        out = []
        for tp in range(2):
            d = 28 + 4*tp
            c = "0" if t == 0 else v(d, 4)
            out.append(f"v_mfma_f32_16x16x32_bf16 {v(d,4)}, {v(64+4*t,4)}, {v(128+64*tp+4*t,4)}, {c}")
        return out
    vlist = [m for t in range(16) for m in vm(t)]
    for m in vlist[0:2]: A.emit(m)
    A.emit("s_nop 5")
    for i in range(4):
        A.emit(f"v_cvt_pk_bf16_f32 v{52+i}, v{12+2*i}, v{13+2*i}")
    for i in range(4):
        A.emit(f"v_cvt_pk_bf16_f32 v{56+i}, v{20+2*i}, v{21+2*i}")
    A.emit("s_waitcnt vmcnt(2)")
    A.emit("buffer_store_dwordx4 v[56:59], v6, s[12:15], s25 offen")
    A.emit("v_mfma_f32_16x16x32_bf16 v[12:15], v[56:59], v[52:55], 0")
    A.emit("v_mfma_f32_16x16x32_bf16 v[16:19], v[36:39], v[52:55], 0")
    A.emit("v_mfma_f32_16x16x32_bf16 v[20:23], v[40:43], v[52:55], 0")
    for m in vlist[2:4]: A.emit(m)
    A.emit("s_nop 5")
    for c in range(3):
        A.emit(f"ds_write_b128 v2, v[{12+4*c}:{15+4*c}] offset:{1024*c}")
    stamp(A,2)
    A.emit("s_waitcnt lgkmcnt(0)")
    A.emit("s_barrier")
    stamp(A,3)
    XR = [12, 18, 36, 52]
    for w in range(4):
        A.emit(f"ds_read_b128 {v(XR[w],4)}, v1 offset:{3072*w}")
        A.emit(f"ds_read_b64 {v(XR[w]+4,2)}, v4 offset:{3072*w}")
    for m in vlist[4:8]: A.emit(m)
    for w in range(1, 4):
        A.emit(f"s_waitcnt lgkmcnt({6-2*w})")
        for i in range(0, 6, 2):
            A.emit(f"v_pk_add_f32 {v(12+i,2)}, {v(12+i,2)}, {v(XR[w]+i,2)}")
    sm = softmax6_list(12, 24, 40, 34)
    interleave(A, sm, vlist[8:], 3)
    A.emit("v_cvt_pk_bf16_f32 v40, v12, v13"); A.emit("v_cvt_pk_bf16_f32 v41, v14, v15")
    A.emit("v_cvt_pk_bf16_f32 v36, v16, v17")
    A.emit("v_mov_b32 v42, 0"); A.emit("v_mov_b32 v43, 0")
    A.emit("v_mov_b32_dpp v37, v36 row_ror:8 row_mask:0xf bank_mask:0xf")
    A.emit("v_mov_b32_dpp v38, v40 row_ror:8 row_mask:0xf bank_mask:0xf")
    A.emit("v_mov_b32_dpp v39, v41 row_ror:8 row_mask:0xf bank_mask:0xf")
    A.emit("v_cvt_pk_bf16_f32 v52, v28, v29"); A.emit("v_cvt_pk_bf16_f32 v53, v30, v31")
    A.emit("v_mov_b32 v54, 0"); A.emit("v_mov_b32 v55, 0")
    A.emit("v_cvt_pk_bf16_f32 v56, v32, v33"); A.emit("v_cvt_pk_bf16_f32 v57, v34, v35")
    A.emit("v_mov_b32 v58, 0"); A.emit("v_mov_b32 v59, 0")
    A.emit("s_waitcnt vmcnt(1)")
    A.emit("v_mfma_f32_16x16x32_bf16 v[12:15], v[44:47], v[36:39], 0")
    A.emit("v_mfma_f32_16x16x32_bf16 v[16:19], v[48:51], v[36:39], 0")
    A.emit("v_mfma_f32_16x16x32_bf16 v[12:15], v[52:55], v[40:43], v[12:15]")
    A.emit("v_mfma_f32_16x16x32_bf16 v[16:19], v[56:59], v[40:43], v[16:19]")
    A.emit("v_mov_b32 v24, v52"); A.emit("v_mov_b32 v25, v53"); A.emit("v_mov_b32 v26, v56"); A.emit("v_mov_b32 v27, v57")
    A.emit("buffer_store_dwordx4 v[24:27], v6, s[12:15], s26 offen")
    A.emit("s_cmp_eq_u32 s7, 63")
    A.emit("s_cbranch_scc1 rec_end")
    def wo_read(c):
        for u in range(4):
            base = "v11" if u < 2 else "v0"
            st = 64 + 16*(c & 1) + 4*u
            A.emit(f"ds_read_b128 v[{st}:{st+3}], {base} offset:{(u&1)*32768 + c*1024}")
    wo_read(0); wo_read(1)
    A.emit("s_add_u32 s23, s23, 0x40000")
    A.emit("s_add_u32 s24, s24, 0x40000")
    A.emit("s_add_u32 s25, s25, 0x20000")
    A.emit("s_add_u32 s26, s26, 0x20000")
    for i in range(4):
        A.emit(f"v_cvt_pk_bf16_f32 v{20+i}, v{12+2*i}, v{13+2*i}")
    A.emit("ds_write_b128 v60, v[20:23]")
    stamp(A,4)
    A.emit("s_waitcnt lgkmcnt(0)")
    A.emit("s_barrier")
    stamp(A,5)
    for u in range(4):
        A.emit(f"ds_read_b128 v[{12+4*u}:{15+4*u}], v61 offset:{1024*u}")
    A.emit("s_mov_b32 s20, s27")
    A.emit("s_waitcnt lgkmcnt(0)")
    def outproj(fl):
        def fin(p):
            d0, d1 = 96 + 8*p, 100 + 8*p
            for r in range(4):
                A.emit(f"v_mov_b32_dpp v{d0+r}, v{d1+r} row_shr:8 row_mask:0xf bank_mask:0xc")
            for r in range(4):
                A.emit(f"v_and_or_b32 v{d0+r}, v{d0+r}, s38, v63")
            A.emit(f"buffer_store_dwordx4 {v(d0,4)}, v9, s[12:15], s20 offen{fl}")
            A.emit("s_add_u32 s20, s20, 32768")
        for c in range(8):
            if c >= 2:
                A.emit("s_waitcnt lgkmcnt(4)" if c < 7 else "s_waitcnt lgkmcnt(0)")
            d = 96 + 4*c
            for u in range(4):
                st = 64 + 16*(c & 1) + 4*u
                cc = "0" if u == 0 else v(d, 4)
                A.emit(f"v_mfma_f32_16x16x32_bf16 {v(d,4)}, {v(st,4)}, {v(12+4*u,4)}, {cc}")
            if c + 2 < 8:
                wo_read(c + 2)
            if c in (3, 5, 7):
                fin((c - 3) // 2)
        A.emit("s_nop 7")
        fin(3)
    handoff_stores(outproj, "rec_op")
    stamp(A,6)
    A.emit("s_mov_b32 s30, 0")
    A.label("rec_rpoll")
    for it in range(4):
        A.emit(f"buffer_load_dwordx4 v[{64+4*it}:{67+4*it}], v6, s[12:15], s28 offen offset:{it*1024} sc1")
    A.emit("s_waitcnt vmcnt(0)")
    A.emit("v_or3_b32 v52, v64, v65, v66")
    for i in range(3, 15, 2):
        A.emit(f"v_or3_b32 v52, v52, v{64+i}, v{65+i}")
    A.emit("v_or_b32 v52, v52, v79")
    A.emit("v_and_b32 v52, s39, v52")
    A.emit("v_cmp_ne_u32 vcc, 0, v52")
    A.emit("s_cbranch_vccz rec_rpoll_ok")
    A.emit("s_add_u32 s30, s30, 1")
    A.emit(f"s_cmp_lt_u32 s30, {SPIN}")
    A.emit("s_cbranch_scc1 rec_rpoll")
    A.label("rec_rpoll_ok")
    stamp(A,7)
    for r in range(4):
        A.emit(f"v_add_f32 v{12+r}, v{64+r}, v{68+r}")
    for it in range(2, 4):
        for r in range(4):
            A.emit(f"v_add_f32 v{12+r}, v{12+r}, v{64+4*it+r}")
    A.emit("s_nop 0")
    for r in range(4):
        A.emit(f"v_add_f32_dpp v{12+r}, v{12+r}, v{12+r} row_ror:8 row_mask:0xf bank_mask:0xf")
    for sw in ("v_permlane16_swap_b32", "v_permlane32_swap_b32"):
        for r in range(4):
            A.emit(f"v_mov_b32 v{16+r}, v{12+r}")
        A.emit("s_nop 0")
        for r in range(4):
            A.emit(f"{sw} v{12+r}, v{16+r}")
        A.emit("s_nop 0")
        for r in range(4):
            A.emit(f"v_add_f32 v{12+r}, v{12+r}, v{16+r}")
    A.emit("v_cvt_pk_bf16_f32 v16, v12, v13")
    A.emit("v_cvt_pk_bf16_f32 v17, v14, v15")
    A.emit("s_add_u32 s20, s22, s29")
    handoff_stores(lambda fl: A.emit(f"buffer_store_dwordx2 v[16:17], v10, s[12:15], s20 offen{fl}"), "rec_pub")
    stamp(A,8)
    if STAMP:
        A.emit("s_cmp_lg_u32 s7, 10")
        A.emit("s_cbranch_scc1 rec_next")
        A.emit("s_cmp_lg_u32 s6, 0")
        A.emit("s_cbranch_scc1 rec_next")
        A.emit("s_cmp_lg_u32 s3, 0")
        A.emit("s_cbranch_scc1 rec_next")
        for i in range(9):
            A.emit(f"v_mov_b32 v12, s{60+2*i}")
            A.emit(f"v_mov_b32 v13, {128+4*i}")
            A.emit("buffer_store_dword v12, v13, s[16:19], 0 offen")
        A.emit("v_mov_b32 v12, s11")
        A.emit("v_mov_b32 v13, 168")
        A.emit("buffer_store_dword v12, v13, s[16:19], 0 offen")
        A.emit("s_memrealtime s[86:87]")
        A.emit("s_waitcnt lgkmcnt(0)")
        for i in range(4):
            A.emit(f"v_mov_b32 v12, s{80+2*i}")
            A.emit(f"v_mov_b32 v13, {176+4*i}")
            A.emit("buffer_store_dword v12, v13, s[16:19], 0 offen")
    A.label("rec_next")
    A.emit("s_add_u32 s7, s7, 1")
    A.emit("s_add_u32 s22, s22, 8192")
    A.emit("s_xor_b32 s27, s27, 0x80000")
    A.emit("s_xor_b32 s28, s28, 0x80000")
    A.emit("s_branch rec_step")
    A.label("rec_end")
    A.emit("s_endpgm")
    return name, kernel_desc(name, 256, agpr=256), f"grid=({NWG},1,1) block=(256,1,1) lds={LDS_TOTAL}"
```

```python
from common import *
from k_rec import SCALE

def gen_attn(A):
    name = "attn_kernel"
    kernel_begin(A, name)
    A.emit("s_cmp_ge_u32 s2, 512")
    A.emit("s_cbranch_scc1 attn_end")
    load_ptr(A, 4, "ws")
    A.emit("v_lshrrev_b32 v1, 6, v0")
    A.emit("v_and_b32 v2, 63, v0")
    A.emit("s_nop 0")
    A.emit("v_readfirstlane_b32 s3, v1")
    A.emit("s_lshl_b32 s6, s2, 2")
    A.emit("s_add_u32 s6, s6, s3")
    A.emit("s_lshr_b32 s7, s6, 5")
    A.emit("s_and_b32 s8, s6, 31")
    A.emit("s_waitcnt lgkmcnt(0)")
    make_srd(A, 12, 4, WS_BYTES - 1)
    A.emit("v_and_b32 v3, 15, v2")
    A.emit("v_lshrrev_b32 v4, 4, v2")
    A.emit("v_lshlrev_b32 v6, 4, v2")
    A.emit("v_lshlrev_b32 v7, 13, v3")
    A.emit("v_lshl_add_u32 v7, v4, 4, v7")
    A.emit("v_lshlrev_b32 v8, 6, v3")
    A.emit("v_lshl_add_u32 v8, v4, 4, v8")
    A.emit("s_lshl_b32 s20, s7, 18")
    A.emit("s_lshl_b32 s21, s8, 8")
    A.emit("s_add_u32 s20, s20, s21")
    QF, KF, KM, VT, VM = 32, 64, 96, 112, 144
    A.emit(f"s_add_u32 s22, s20, {WS['Q']}")
    A.emit(f"s_add_u32 s23, s20, {WS['Q'] + 0x20000}")
    A.emit(f"s_add_u32 s24, s20, {WS['K']}")
    A.emit(f"s_add_u32 s25, s20, {WS['K'] + 0x20000}")
    for tl in range(2):
        for u in range(4):
            A.emit(f"buffer_load_dwordx4 {v(QF+16*tl+4*u,4)}, v7, s[12:15], s{22+tl} offen offset:{64*u}")
    for tl in range(2):
        for u in range(4):
            A.emit(f"buffer_load_dwordx4 {v(KF+16*tl+4*u,4)}, v7, s[12:15], s{24+tl} offen offset:{64*u}")
    A.emit("s_lshl_b32 s26, s6, 12")
    A.emit(f"s_add_u32 s26, s26, {WS['KMEM']}")
    for u in range(4):
        A.emit(f"buffer_load_dwordx4 {v(KM+4*u,4)}, v6, s[12:15], s26 offen offset:{1024*u}")
    A.emit("s_lshl_b32 s27, s6, 13")
    A.emit(f"s_add_u32 s28, s27, {WS['VT']}")
    A.emit(f"s_add_u32 s29, s27, {WS['VT'] + 4096}")
    for T in range(8):
        A.emit(f"buffer_load_dwordx4 {v(VT+4*T,4)}, v8, s[12:15], s{28+(T>>2)} offen offset:{1024*(T&3)}")
    A.emit("s_lshl_b32 s30, s6, 12")
    A.emit(f"s_add_u32 s30, s30, {WS['VMEM']}")
    for w in range(4):
        A.emit(f"buffer_load_dwordx4 {v(216+4*w,4)}, v6, s[12:15], s30 offen offset:{1024*w}")
    A.emit("s_mov_b32 s40, 0")
    A.emit("s_mov_b32 s41, -1")
    A.emit("v_lshlrev_b32 v9, 2, v4")
    for r in range(4):
        A.emit(f"v_add_u32 v10, {r}, v9")
        A.emit(f"v_cmp_gt_u32 s[{44+2*r}:{45+2*r}], v10, v3")
    A.emit("s_waitcnt vmcnt(12)")
    SB = 176
    for qt in range(2):
        for kt in range(3):
            if qt == 0 and kt == 2: continue
            d = SB + 12*qt + 4*kt
            for u in range(4):
                af = v(KM+4*u,4) if kt == 0 else v(KF+16*(kt-1)+4*u,4)
                c = "0" if u == 0 else v(d,4)
                A.emit(f"v_mfma_f32_16x16x32_bf16 {v(d,4)}, {af}, {v(QF+16*qt+4*u,4)}, {c}")
    A.emit("s_nop 7")
    PF = 200
    T0 = 12
    for qt in range(2):
        S = SB + 12*qt
        n = 8 if qt == 0 else 12
        for i in range(0, n, 2):
            round_bf16_2(A, S+i, S+i+1, T0)
        for i in range(n):
            A.emit(f"v_mul_f32 {v(S+i)}, {SCALE:#x}, {v(S+i)}")
        for i in range(0, n, 2):
            round_bf16_2(A, S+i, S+i+1, T0)
        A.emit(f"v_mov_b32 {v(T0)}, 0xff800000")
        for i in range(4):
            A.emit(f"v_cndmask_b32 {v(S+i)}, {v(S+i)}, {v(T0)}, s[40:41]")
        dg = S + 4 + 4*qt
        for r in range(4):
            A.emit(f"v_cndmask_b32 {v(dg+r)}, {v(dg+r)}, {v(T0)}, s[{44+2*r}:{45+2*r}]")
        A.emit(f"v_max3_f32 {v(T0)}, {v(S)}, {v(S+1)}, {v(S+2)}")
        i = 3
        while i < n:
            if i + 1 < n:
                A.emit(f"v_max3_f32 {v(T0)}, {v(T0)}, {v(S+i)}, {v(S+i+1)}"); i += 2
            else:
                A.emit(f"v_max_f32 {v(T0)}, {v(T0)}, {v(S+i)}"); i += 1
        g_allreduce(A, "v_max_f32", T0, T0+1, T0+2)
        for i in range(n):
            A.emit(f"v_sub_f32 {v(S+i)}, {v(S+i)}, {v(T0)}")
            A.emit(f"v_mul_f32 {v(S+i)}, {LOG2E:#x}, {v(S+i)}")
            A.emit(f"v_exp_f32 {v(S+i)}, {v(S+i)}")
        A.emit("s_nop 0")
        A.emit(f"v_add_f32 {v(T0)}, {v(S)}, {v(S+1)}")
        for i in range(2, n):
            A.emit(f"v_add_f32 {v(T0)}, {v(T0)}, {v(S+i)}")
        g_allreduce(A, "v_add_f32", T0, T0+1, T0+2)
        A.emit(f"v_rcp_f32 {v(T0)}, {v(T0)}")
        A.emit("s_nop 0")
        for i in range(n):
            A.emit(f"v_mul_f32 {v(S+i)}, {v(S+i)}, {v(T0)}")
        p0 = PF + 8*qt
        A.emit(f"v_cvt_pk_bf16_f32 {v(p0)}, {v(S+4)}, {v(S+5)}")
        A.emit(f"v_cvt_pk_bf16_f32 {v(p0+1)}, {v(S+6)}, {v(S+7)}")
        if qt == 0:
            A.emit(f"v_mov_b32 {v(p0+2)}, 0"); A.emit(f"v_mov_b32 {v(p0+3)}, 0")
        else:
            A.emit(f"v_cvt_pk_bf16_f32 {v(p0+2)}, {v(S+8)}, {v(S+9)}")
            A.emit(f"v_cvt_pk_bf16_f32 {v(p0+3)}, {v(S+10)}, {v(S+11)}")
        A.emit(f"v_cvt_pk_bf16_f32 {v(p0+4)}, {v(S)}, {v(S+1)}")
        A.emit(f"v_cvt_pk_bf16_f32 {v(p0+5)}, {v(S+2)}, {v(S+3)}")
        A.emit(f"v_mov_b32 {v(p0+6)}, 0"); A.emit(f"v_mov_b32 {v(p0+7)}, 0")
    A.emit("s_waitcnt vmcnt(0)")
    for T in range(8):
        src = 216 + 4*(T >> 1) + 2*(T & 1)
        A.emit(f"v_mov_b32 {v(VM+4*T)}, {v(src)}"); A.emit(f"v_mov_b32 {v(VM+4*T+1)}, {v(src+1)}")
        A.emit(f"v_mov_b32 {v(VM+4*T+2)}, 0"); A.emit(f"v_mov_b32 {v(VM+4*T+3)}, 0")
    A.emit("s_nop 1")
    for qt in range(2):
        for T in range(8):
            d = 32 + (qt*8 + T)*4
            A.emit(f"v_mfma_f32_16x16x32_bf16 {v(d,4)}, {v(VT+4*T,4)}, {v(PF+8*qt,4)}, 0")
        for T in range(8):
            d = 32 + (qt*8 + T)*4
            A.emit(f"v_mfma_f32_16x16x32_bf16 {v(d,4)}, {v(VM+4*T,4)}, {v(PF+8*qt+4,4)}, {v(d,4)}")
    A.emit("s_nop 7")
    A.emit(f"s_add_u32 s22, s20, {WS['O']}")
    A.emit(f"s_add_u32 s23, s20, {WS['O'] + 0x20000}")
    for qt in range(2):
        for u in range(4):
            d = 32 + (qt*8 + 2*u)*4
            o = 176 + 4*(qt*4+u)
            for i in range(4):
                A.emit(f"v_cvt_pk_bf16_f32 {v(o+i)}, {v(d+2*i)}, {v(d+2*i+1)}")
            A.emit(f"buffer_store_dwordx4 {v(o,4)}, v7, s[12:15], s{22+qt} offen offset:{64*u}")
    A.label("attn_end")
    A.emit("s_endpgm")
    return name, kernel_desc(name, 232), "grid=(512,1,1) block=(256,1,1) lds=0"


def gen_gemm_splitk(A, name, a_off, a_pitch, w_off, ksteps, epi):
    assert ksteps % 4 == 0
    kw = ksteps // 4
    kernel_begin(A, name)
    A.emit("s_cmp_ge_u32 s2, 256")
    A.emit(f"s_cbranch_scc1 {name}_end")
    load_ptr(A, 4, "ws"); load_ptr(A, 8, "out"); load_ptr(A, 10, "b2")
    A.emit("v_lshrrev_b32 v1, 6, v0")
    A.emit("v_and_b32 v2, 63, v0")
    A.emit("s_nop 0")
    A.emit("v_readfirstlane_b32 s3, v1")
    A.emit("s_and_b32 s6, s2, 7")
    A.emit("s_lshl_b32 s6, s6, 2")
    A.emit("s_bfe_u32 s7, s2, 0x20003")
    A.emit("s_add_u32 s6, s6, s7")
    A.emit("s_lshr_b32 s7, s2, 5")
    A.emit("s_waitcnt lgkmcnt(0)")
    make_srd(A, 12, 4, WS_BYTES - 1)
    A.emit("v_and_b32 v3, 15, v2")
    A.emit("v_lshrrev_b32 v4, 4, v2")
    A.emit("v_lshlrev_b32 v6, 4, v2")
    A.emit(f"s_mov_b32 s20, {a_pitch}")
    A.emit("v_mul_lo_u32 v7, v3, s20")
    A.emit("v_lshl_add_u32 v7, v4, 4, v7")
    A.emit(f"s_mul_i32 s21, s6, {64*a_pitch}")
    A.emit(f"s_mul_i32 s22, s3, {kw*64}")
    A.emit("s_add_u32 s21, s21, s22")
    A.emit(f"s_add_u32 s24, s21, {a_off}")
    for rt in range(1, 4):
        A.emit(f"s_add_u32 s{24+rt}, s24, {16*rt*a_pitch}")
    A.emit(f"s_mul_i32 s28, s3, {kw*32768}")
    A.emit("s_lshl_b32 s29, s7, 12")
    A.emit("s_add_u32 s28, s28, s29")
    A.emit(f"s_add_u32 s28, s28, {w_off}")
    ACC = 128
    RDK = 8
    def loads(stage):
        for rt in range(4):
            A.emit(f"buffer_load_dwordx4 {a(32*stage+4*rt,4)}, v7, s[12:15], s{24+rt} offen")
        for c in range(4):
            A.emit(f"buffer_load_dwordx4 {a(32*stage+16+4*c,4)}, v6, s[12:15], s28 offen offset:{1024*c}")
        A.emit("v_add_u32 v7, 64, v7")
        A.emit("s_add_u32 s28, s28, 32768")
    for st in range(min(RDK - 1, kw)):
        loads(st)
    for k in range(kw):
        if k + RDK - 1 < kw:
            loads((k + RDK - 1) % RDK)
            A.emit(f"s_waitcnt vmcnt({8*(RDK-1)})")
        else:
            A.emit(f"s_waitcnt vmcnt({8*(kw-1-k)})")
        st = k % RDK
        for rt in range(4):
            for c in range(4):
                d = ACC + (rt*4 + c)*4
                cc = "0" if k == 0 else v(d,4)
                A.emit(f"v_mfma_f32_16x16x32_bf16 {v(d,4)}, {a(32*st+16+4*c,4)}, {a(32*st+4*rt,4)}, {cc}")
    A.emit("s_nop 7")
    A.emit("s_lshl_b32 s21, s3, 14")
    A.emit("v_add_u32 v8, s21, v6")
    for i in range(16):
        A.emit(f"ds_write_b128 v8, {v(ACC+4*i,4)} offset:{1024*i}")
    A.emit("s_waitcnt vmcnt(0) lgkmcnt(0)")
    A.emit("s_barrier")
    A.emit("s_lshl_b32 s21, s3, 12")
    A.emit("v_add_u32 v8, s21, v6")
    for w in range(4):
        for c in range(4):
            A.emit(f"ds_read_b128 {v(32+16*w+4*c,4)}, v8 offset:{16384*w + 1024*c}")
    A.emit("s_waitcnt lgkmcnt(0)")
    for i in range(16):
        A.emit(f"v_add_f32 v{32+i}, v{32+i}, v{48+i}")
        A.emit(f"v_add_f32 v{32+i}, v{32+i}, v{64+i}")
        A.emit(f"v_add_f32 v{32+i}, v{32+i}, v{80+i}")
    A.emit("s_lshl_b32 s21, s6, 6")
    A.emit("s_lshl_b32 s22, s3, 4")
    A.emit("s_add_u32 s21, s21, s22")
    A.emit("s_lshl_b32 s21, s21, 10")
    A.emit("s_lshl_b32 s22, s7, 7")
    A.emit("s_add_u32 s21, s21, s22")
    A.emit("v_lshlrev_b32 v9, 10, v3")
    A.emit("v_lshl_add_u32 v9, v4, 3, v9")
    if epi == "aout":
        A.emit(f"s_add_u32 s21, s21, {WS['AOUT']}")
        for c in range(4):
            A.emit(f"v_cvt_pk_bf16_f32 v{48+2*c}, v{32+4*c}, v{33+4*c}")
            A.emit(f"v_cvt_pk_bf16_f32 v{49+2*c}, v{34+4*c}, v{35+4*c}")
            A.emit(f"buffer_store_dwordx2 {v(48+2*c,2)}, v9, s[12:15], s21 offen offset:{32*c}")
    else:
        make_srd(A, 16, 8, 2048*1024)
        make_srd(A, 36, 10, 1024)
        A.emit(f"s_add_u32 s23, s21, {WS['X1']}")
        A.emit("v_lshlrev_b32 v10, 3, v4")
        A.emit("v_lshlrev_b32 v11, 4, v4")
        A.emit("s_lshl_b32 s24, s7, 8")
        A.emit(f"s_add_u32 s24, s24, {WS['MOD'] + 2560*4}")
        for c in range(4):
            A.emit(f"buffer_load_dwordx2 {v(48+2*c,2)}, v9, s[12:15], s23 offen offset:{32*c}")
            A.emit(f"buffer_load_dwordx2 {v(56+2*c,2)}, v10, s[36:39], s22 offen offset:{32*c}")
            A.emit(f"buffer_load_dwordx4 {v(64+4*c,4)}, v11, s[12:15], s24 offen offset:{64*c}")
        A.emit("s_waitcnt vmcnt(0)")
        for c in range(4):
            for hlf in range(2):
                x0, x1 = 32+4*c+2*hlf, 33+4*c+2*hlf
                round_bf16_2(A, x0, x1, 12)
                A.emit(f"v_lshlrev_b32 v13, 16, v{56+2*c+hlf}")
                A.emit(f"v_and_b32 v14, 0xffff0000, v{56+2*c+hlf}")
                A.emit(f"v_add_f32 v{x0}, v{x0}, v13"); A.emit(f"v_add_f32 v{x1}, v{x1}, v14")
                round_bf16_2(A, x0, x1, 12)
                A.emit(f"v_mul_f32 v{x0}, v{x0}, v{64+4*c+2*hlf}"); A.emit(f"v_mul_f32 v{x1}, v{x1}, v{65+4*c+2*hlf}")
                round_bf16_2(A, x0, x1, 12)
                A.emit(f"v_lshlrev_b32 v13, 16, v{48+2*c+hlf}")
                A.emit(f"v_and_b32 v14, 0xffff0000, v{48+2*c+hlf}")
                A.emit(f"v_add_f32 v{x0}, v{x0}, v13"); A.emit(f"v_add_f32 v{x1}, v{x1}, v14")
                A.emit(f"v_cvt_pk_bf16_f32 v{80+2*c+hlf}, v{x0}, v{x1}")
            A.emit(f"buffer_store_dwordx2 {v(80+2*c,2)}, v9, s[16:19], s21 offen offset:{32*c}")
    A.label(f"{name}_end")
    A.emit("s_endpgm")
    return name, kernel_desc(name, 192, agpr=256), "grid=(256,1,1) block=(256,1,1) lds=65536"

def gen_oproj(A):
    return gen_gemm_splitk(A, "oproj_kernel", WS["O"], 8192, WS["WO"], 128, "aout")
def gen_mlp2(A):
    return gen_gemm_splitk(A, "mlp2_kernel", WS["H1"], 3584, WS["W2"], 56, "out")


def gen_ln2(A):
    name = "ln2_kernel"
    kernel_begin(A, name)
    A.emit("s_cmp_ge_u32 s2, 128")
    A.emit("s_cbranch_scc1 ln2_end")
    load_ptr(A, 4, "ws"); load_ptr(A, 6, "x")
    A.emit("v_lshrrev_b32 v1, 6, v0")
    A.emit("v_and_b32 v2, 63, v0")
    A.emit("s_nop 0")
    A.emit("v_readfirstlane_b32 s3, v1")
    A.emit("s_waitcnt lgkmcnt(0)")
    make_srd(A, 12, 4, WS_BYTES - 1)
    make_srd(A, 16, 6, 2048 * 1024)
    A.emit("v_lshlrev_b32 v5, 5, v2")
    for k, idx in enumerate((2, 3, 4)):
        A.emit(f"s_mov_b32 s20, {WS['MOD'] + idx*2048}")
        A.emit(f"buffer_load_dwordx4 {v(40+8*k,4)}, v5, s[12:15], s20 offen")
        A.emit(f"buffer_load_dwordx4 {v(44+8*k,4)}, v5, s[12:15], s20 offen offset:16")
    A.emit("s_lshl_b32 s24, s2, 2")
    A.emit("s_add_u32 s24, s24, s3")
    A.emit("s_lshl_b32 s24, s24, 12")
    A.emit(f"s_add_u32 s25, s24, {WS['AOUT']}")
    A.emit(f"s_add_u32 s26, s24, {WS['X1']}")
    A.emit(f"s_add_u32 s27, s24, {WS['Y']}")
    A.emit("v_lshlrev_b32 v3, 4, v2")
    for i in range(4):
        A.emit(f"buffer_load_dwordx4 {v(64+8*i,4)}, v3, s[16:19], s24 offen offset:{1024*i}")
        A.emit(f"buffer_load_dwordx4 {v(68+8*i,4)}, v3, s[12:15], s25 offen offset:{1024*i}")
    A.emit("s_waitcnt vmcnt(8)")
    for i in range(0, 8, 2):
        A.emit(f"v_add_f32 v{56+i}, 1.0, v{56+i}"); A.emit(f"v_add_f32 v{57+i}, 1.0, v{57+i}")
        round_bf16_2(A, 56+i, 57+i, 12)
    for r in range(4):
        A.emit(f"s_waitcnt vmcnt({6-2*r + 2*r})")
        unpack8(A, 16, 64+8*r)
        unpack8(A, 24, 68+8*r)
        for i in range(0, 8, 2):
            A.emit(f"v_mul_f32 v{24+i}, v{24+i}, v{40+i}"); A.emit(f"v_mul_f32 v{25+i}, v{25+i}, v{41+i}")
            round_bf16_2(A, 24+i, 25+i, 12)
            A.emit(f"v_add_f32 v{16+i}, v{16+i}, v{24+i}"); A.emit(f"v_add_f32 v{17+i}, v{17+i}, v{25+i}")
            round_bf16_2(A, 16+i, 17+i, 12)
        pack8(A, 96+8*r, 16)
        A.emit(f"buffer_store_dwordx4 {v(96+8*r,4)}, v3, s[12:15], s26 offen offset:{1024*r}")
        layernorm8(A, 16, 32)
        for i in range(0, 8, 2):
            A.emit(f"v_mul_f32 v{16+i}, v{16+i}, v{56+i}"); A.emit(f"v_mul_f32 v{17+i}, v{17+i}, v{57+i}")
            round_bf16_2(A, 16+i, 17+i, 12)
            A.emit(f"v_add_f32 v{16+i}, v{16+i}, v{48+i}"); A.emit(f"v_add_f32 v{17+i}, v{17+i}, v{49+i}")
            round_bf16_2(A, 16+i, 17+i, 12)
        layernorm8(A, 16, 32)
        pack8(A, 100+8*r, 16)
        A.emit(f"buffer_store_dwordx4 {v(100+8*r,4)}, v3, s[12:15], s27 offen offset:{1024*r}")
    A.label("ln2_end")
    A.emit("s_endpgm")
    return name, kernel_desc(name, 128), "grid=(128,1,1) block=(256,1,1) lds=0"


def gen_mlp1(A):
    name = "mlp1_kernel"
    kernel_begin(A, name)
    A.emit("s_cmp_ge_u32 s2, 224")
    A.emit("s_cbranch_scc1 mlp1_end")
    load_ptr(A, 4, "ws"); load_ptr(A, 10, "b1")
    A.emit("v_lshrrev_b32 v1, 6, v0")
    A.emit("v_and_b32 v2, 63, v0")
    A.emit("s_nop 0")
    A.emit("v_readfirstlane_b32 s3, v1")
    A.emit("s_and_b32 s6, s2, 15")
    A.emit("s_lshr_b32 s7, s2, 4")
    A.emit("s_waitcnt lgkmcnt(0)")
    make_srd(A, 12, 4, WS_BYTES - 1)
    make_srd(A, 36, 10, 1792*2)
    A.emit("v_and_b32 v3, 15, v2")
    A.emit("v_lshrrev_b32 v4, 4, v2")
    A.emit("v_lshlrev_b32 v6, 4, v2")
    A.emit("v_lshlrev_b32 v5, 10, v3")
    A.emit("v_lshl_add_u32 v5, v4, 4, v5")
    A.emit("s_lshl_b32 s24, s6, 17")
    A.emit("s_lshl_b32 s25, s3, 15")
    A.emit("s_add_u32 s24, s24, s25")
    A.emit(f"s_add_u32 s24, s24, {WS['Y']}")
    A.emit("v_add_u32 v7, s25, v6")
    for half in range(2):
        for t in range(16):
            A.emit(f"buffer_load_dwordx4 {v(64+64*half+4*t,4)}, v5, s[12:15], s24 offen offset:{64*t}")
        A.emit("s_add_u32 s24, s24, 16384")
    A.emit("s_lshl_b32 s26, s7, 2"); A.emit("s_add_u32 s26, s26, s3")
    A.emit("s_lshl_b32 s28, s26, 15")
    A.emit(f"s_add_u32 s28, s28, {WS['W1']}")
    A.emit("s_add_u32 s29, s28, 16384")
    for t in range(16):
        for c in range(2):
            A.emit(f"buffer_load_dwordx4 {a(8*t+4*c,4)}, v6, s[12:15], s{28+c} offen offset:{(t&3)*1024}")
        if t & 3 == 3:
            A.emit("s_add_u32 s28, s28, 4096"); A.emit("s_add_u32 s29, s29, 4096")
    A.emit("s_lshl_b32 s24, s26, 6")
    A.emit("v_lshlrev_b32 v10, 3, v4")
    A.emit("buffer_load_dwordx2 v[12:13], v10, s[36:39], s24 offen")
    A.emit("buffer_load_dwordx2 v[14:15], v10, s[36:39], s24 offen offset:32")
    for i in range(32):
        A.emit(f"s_waitcnt vmcnt({min(63, 31 - i + 34)})")
        A.emit(f"ds_write_b128 v7, {v(64+4*i,4)} offset:{(i>>4)*16384 + (i&15)*1024}")
    AB, ACC = 64, 128
    A.emit("s_waitcnt lgkmcnt(0)")
    A.emit("s_barrier")
    A.emit("v_add_u32 v9, 0x10000, v6")
    for rt in range(8):
        base = "v6" if rt < 4 else "v9"
        A.emit(f"ds_read_b128 {v(AB+4*rt,4)}, {base} offset:{(rt&3)*16384}")
    for t in range(16):
        cb, nb = t & 1, (t + 1) & 1
        if t < 15:
            for rt in range(8):
                base = "v6" if rt < 4 else "v9"
                A.emit(f"ds_read_b128 {v(AB+32*nb+4*rt,4)}, {base} offset:{(rt&3)*16384 + (t+1)*1024}")
            A.emit(f"s_waitcnt vmcnt({2*(15-t)+2}) lgkmcnt(8)")
        else:
            A.emit("s_waitcnt vmcnt(0) lgkmcnt(0)")
        for rt in range(8):
            for c in range(2):
                d = ACC + (rt*2 + c)*4
                src2 = "0" if t == 0 else v(d,4)
                A.emit(f"v_mfma_f32_16x16x32_bf16 {v(d,4)}, {a(8*t+4*c,4)}, {v(AB+32*cb+4*rt,4)}, {src2}")
    for i in range(4):
        A.emit(f"v_lshlrev_b32 v{16+2*i}, 16, v{12+i}")
        A.emit(f"v_and_b32 v{17+2*i}, 0xffff0000, v{12+i}")
    A.emit("s_mov_b32 s20, 3584")
    A.emit("v_mul_lo_u32 v10, v3, s20")
    A.emit("v_lshl_add_u32 v10, v4, 4, v10")
    A.emit(f"s_mul_i32 s25, s6, {128*3584}")
    A.emit("s_add_u32 s25, s25, s24")
    A.emit(f"s_add_u32 s25, s25, {WS['H1']}")
    C0 = 0x3f4c422a
    C1 = 0x3d372713
    A.emit(f"s_mov_b32 s31, {C1:#x}")
    A.emit("s_mov_b32 s32, 0xc038aa3b")
    A.emit(f"s_mov_b32 s33, {C0:#x}")
    for rt in range(8):
        for j in range(0, 8, 2):
            x0 = ACC + rt*8 + j; x1 = x0 + 1
            round_bf16_2(A, x0, x1, 24)
            A.emit(f"v_add_f32 v{x0}, v{x0}, v{16+j}"); A.emit(f"v_add_f32 v{x1}, v{x1}, v{17+j}")
            round_bf16_2(A, x0, x1, 24)
            for x, tt in ((x0, 25), (x1, 26)):
                A.emit(f"v_mul_f32 v{tt}, v{x}, v{x}")
                A.emit(f"v_mul_f32 v{tt}, v{tt}, v{x}")
                A.emit(f"v_fma_f32 v{tt}, v{tt}, s31, v{x}")
                A.emit(f"v_mul_f32 v{tt}, s33, v{tt}")
                A.emit(f"v_mul_f32 v{tt}, s32, v{tt}")
                A.emit(f"v_exp_f32 v{tt}, v{tt}")
            for x, tt in ((x0, 25), (x1, 26)):
                A.emit(f"v_add_f32 v{tt}, 1.0, v{tt}")
                A.emit(f"v_rcp_f32 v{tt}, v{tt}")
            for x, tt in ((x0, 25), (x1, 26)):
                A.emit(f"v_mul_f32 v{x}, v{x}, v{tt}")
            A.emit(f"v_cvt_pk_bf16_f32 v{32 + 4*(rt&3) + j//2}, v{x0}, v{x1}")
        A.emit(f"buffer_store_dwordx4 {v(32+4*(rt&3),4)}, v10, s[12:15], s25 offen")
        A.emit(f"s_add_u32 s25, s25, {16*3584}")
    A.label("mlp1_end")
    A.emit("s_endpgm")
    return name, kernel_desc(name, 192, agpr=128), "grid=(224,1,1) block=(256,1,1) lds=131072"
```

```python
import sys
from common import *
import k_prep, k_qkv, k_rec, k_tail, k_main

HEADER = open("adaLN_cond__memory_aug_recurrent_mem_tr__mixer_channel_mlp__prompt.s.ref").read().split("; Override launch")[0]

def build(gens, path):
    A = Asm()
    A(".amdgcn_target \"amdgcn-amd-amdhsa--gfx950\"")
    A(".text")
    descs = []; launches = []
    for g in gens:
        name, desc, launch = g(A)
        descs.append(desc); launches.append(f"; @launch kernel={name} {launch}")
    out = HEADER + "\n".join(launches) + "\n" + A.text() + ".section .rodata,\"a\"\n"
    for d in descs:
        out += ".p2align 6\n" + d
    open(path, "w").write(out)

if __name__ == "__main__":
    if "stamp" in sys.argv: k_main.STAMP = True
    if "qstamp" in sys.argv: k_qkv.STAMP = True
    if "xcd" in sys.argv: k_rec.XCDHACK = True
    gens = [k_prep.gen_prep, k_prep.gen_ln1, k_main.gen_main, k_tail.gen_oproj, k_tail.gen_ln2, k_tail.gen_mlp1, k_tail.gen_mlp2]
    build(gens, "adaLN_cond__memory_aug_recurrent_mem_tr__mixer_channel_mlp__prompt.s")
```
